```python
import torch

def _softmax(x, axis=-1):
    return torch.softmax(x, dim=axis)
def _gelu(x):
    return torch.nn.functional.gelu(x, approximate="tanh")
def _silu(x):
    return torch.nn.functional.silu(x)
def _sigmoid(x):
    return torch.sigmoid(x)
def _layernorm(x, axis=-1, eps=1e-5):
    m = x.mean(dim=axis, keepdim=True)
    v = x.var(dim=axis, keepdim=True, unbiased=False)
    return (x - m) / torch.sqrt(v + eps)
def _scatter_add(tgt, idx, src, axis=0):
    return tgt.clone().index_add_(axis, idx, src)
def _segment_sum(src, seg, n):
    out = torch.zeros((n,) + src.shape[1:], dtype=src.dtype)
    return out.index_add_(0, seg, src)
def _pad(x, pw):
    flat = tuple(v for pair in reversed(pw) for v in pair)
    return torch.nn.functional.pad(x, flat)

kernel_name = 'standalone__weight_only_int_gptq__prompt'

def setup_inputs():

    _w = (lambda a: (lambda t: t.to(torch.bfloat16) if t.is_floating_point() else t)(torch.as_tensor(a)))
    B, S, D, F = 1, 2048, 1024, 3584
    bits = max(2, min(4, 3))
    pf = 32 // bits
    G = 64 if 64 > 0 else D
    G = max(pf, (G // pf) * pf)
    D = max(G, (D // G) * G)
    ng = D // G
    qmax = 1 << bits
    qw = torch.randint(0, qmax, (D, F)).to(torch.int64)
    packed = torch.zeros((D // pf, F), dtype=torch.int64)
    for i in range(pf):
        packed |= (qw[i::pf] << (i * bits))
    packed = packed.to(torch.int32)
    return {
        "x": _w((lambda *s: torch.randn(*s, dtype=torch.bfloat16) * 0.05)(B, S, D)),
        "qw_packed": _w(packed),
        "scales": _w(torch.abs((lambda *s: torch.randn(*s, dtype=torch.bfloat16) * 0.05)(ng, F)).to(float) * 0.1 + 0.01),
        "zeros": _w(torch.randint(0, qmax, (ng, F)).to(float)),
        "bits": _w((lambda _x: torch.as_tensor(_x, dtype=torch.int32))(bits)),
    }

def reference(x, qw_packed, scales, zeros, bits):
    b = int(bits)
    pf = 32 // b
    mask = (1 << b) - 1
    P, F = qw_packed.shape
    D = P * pf
    ng = scales.shape[0]
    G = D // ng
    shifts = (lambda x, dt: x.to(dt))(torch.arange(pf) * b, qw_packed.dtype)
    qw = ((qw_packed[:, None, :] >> shifts[None, :, None]) & mask).reshape(D, F)
    s = (lambda x, n, axis: torch.repeat_interleave(x, n, dim=axis))(scales, G, axis=0)
    z = (lambda x, n, axis: torch.repeat_interleave(x, n, dim=axis))(zeros, G, axis=0)
    w = ((lambda x, dt: x.to(dt))(qw, x.dtype) - z) * s
    return torch.einsum("bsd,df->bsf", x, w)
```

```python
import sys, argparse
from collections import deque
ap = argparse.ArgumentParser()
def opt(n, d, t=int): ap.add_argument('--'+n, type=t, default=d)
ap.add_argument('-o', default='k.s')
opt('stamps', 0); opt('pre', 0); opt('dbg', '', str); opt('xr', 2); opt('rot', 4); opt('pf', 1)
opt('cv', 4.5, float); opt('cm', 18.0, float)
opt('va', '1300,2200', str)
opt('ylead', 6); opt('ypre', 100); opt('ywp', 1)
opt('yi', '125,125,125,126,126', str)
opt('od', 4); opt('oc', 3); opt('yu', 12); opt('wi', 0); opt('ord', 24); opt('b1v', 0)
opt('D', 7); opt('bs', 2); opt('bk', 10); opt('wg', 4); opt('capb', 12)
opt('rka', '0,2,4,6,8,10,12,14', str); opt('rkc', '0,1,2,3,4,5,6,7', str); opt('rkb', '6,7,8,9,10,11,12,13', str)
opt('sz0', 22); opt('sz1', 41); opt('stmod', '', str)
opt('order', 'S2,S3,S4,S5,S6,F0,S7,F1,F2,F3,F4,F5,F6,F7', str)
opt('pw', '2,4,6,8,9,10,11,12', str)
args = ap.parse_args()
IL = lambda s: [int(x) for x in s.split(',')]
NAME = "standalone__weight_only_int_gptq__prompt_kernel"
BLK = 1040; UNIT = 16*BLK; PAIR = 2*UNIT
SPARE0 = 8*UNIT; XS = 7680; LDS_BYTES = SPARE0 + 4*XS
XBYTES = 2048*2040; QBYTES = 102*3584*4; SBYTES = 17*3584*2; OBYTES = 2048*3584*2
ACC_OFF = 176; NOACC = 5
SLOTS = ['A'] + args.order.split(','); NSL = len(SLOTS)
PW = IL(args.pw)
XPAIR = {'S0': 3, 'S1': 1}
for n in range(1, NSL): XPAIR[SLOTS[n]] = [2, 0, 1][(n-1) % 3]
PREG = [6 + (p % 3) for p in range(8)]
for p in range(8):
    fs = SLOTS.index(f"F{p}"); assert PW[p] < fs
    ss = 0 if p < 2 else SLOTS.index(f"S{p}"); assert PW[p] > ss
    if p >= 3: assert PW[p] > SLOTS.index(f"F{p-3}")
    if p+NOACC < 8: assert PW[p] < SLOTS.index(f"S{p+NOACC}")
NY0 = SLOTS.index('F0')
DPLAN = {n: [(SLOTS[n+2], j) for j in range(8)] for n in range(1, NSL-2)}
def downer(n, j):
    if n < NY0: return 'O' if j < args.od else 'Y'
    return 'O' if SLOTS[n][0] == 'F' else 'Y'
vA_, vB_ = 128, 129
vT = [130, 131, 132]; vMA, vMB = 133, 134; vC = 135
vF = [136, 137, 138, 139]
vM = {1:140, 4:141, 7:142, 0:143, 3:144, 6:145}
vMC, vSH1, vSH2, vS2, vZ2, vQm, vQt, vSO, vWrd, vOSZ = range(146, 156)
vR = [168, 169]; vDO, vDY, vP, vOUT, vOUT2 = 170, 171, 172, 173, 174
sX, sQ, sS, sZ, sO, sWS = 8, 12, 16, 20, 24, 28
sP1 = 32
(sK7, sM30, sW8, sCB, sRB, sROT, sSTRIP, sROLE, sL1, sXB, sOB, sTMP, sTMP2, sLQ, sLS, sXR, sCOL, sU, sHI) = range(34, 53)
sTX0 = 54; sTO0 = 62; sST = 82

class Em:
    nbar = 0
    def __init__(s): s.L = []; s.vmq = []; s.lgq = []; s.names = []
    def A(s, t): s.L.append("    " + t)
    def vm(s, t, tag): s.A(t); s.vmq.append(tag)
    def lg(s, t, tag): s.A(t); s.lgq.append(tag)
    def wait(s, vtag=None, ltag=None, lall=False):
        parts = []
        if vtag is not None and vtag in s.vmq:
            i = len(s.vmq) - 1 - s.vmq[::-1].index(vtag); n = len(s.vmq) - 1 - i; del s.vmq[:i+1]
            parts.append(f"vmcnt({min(n,63)})")
        if lall:
            if s.lgq: parts.append("lgkmcnt(0)"); s.lgq.clear()
        elif ltag is not None and ltag in s.lgq:
            i = len(s.lgq) - 1 - s.lgq[::-1].index(ltag); n = len(s.lgq) - 1 - i; del s.lgq[:i+1]
            parts.append(f"lgkmcnt({min(n,15)})")
        if parts: s.A("s_waitcnt " + " ".join(parts))
    def stamp(s, nm):
        if args.stamps:
            s.A("s_waitcnt lgkmcnt(0)"); s.lgq.clear()
            s.A("s_memtime s[6:7]"); s.A("s_waitcnt lgkmcnt(0)")
            s.A(f"s_mov_b32 s{sST+len(s.names)}, s6"); s.names.append(nm); assert len(s.names) <= 15
    def barrier(s, slot):
        tags = [t for t in s.vmq if t[0] == 'x' and t[1] == slot]
        s.wait(vtag=tags[-1] if tags else None, lall=True)
        s.A("s_barrier"); s.nbar += 1
    def x_pre(s, it):
        sl, j = it; tau = int(sl[1])
        if j: s.A(f"s_add_u32 s{sU}, s{sTX0+tau}, {j*2040}")
        s.A(f"s_add_u32 m0, s{sL1}, {XPAIR[sl]*PAIR + j*BLK}")
    def x_go(s, it):
        sl, j = it; tau = int(sl[1])
        s.vm(f"buffer_load_dwordx4 v{vDO if sl[0] == 'S' else vDY}, s[{sX}:{sX+3}], s{sU if j else sTX0+tau} offen lds", ('x', sl, j))
    def x_full(s, it):
        sl, j = it; tau = int(sl[1])
        s.A(f"s_add_u32 m0, s{sL1}, {XPAIR[sl]*PAIR + j*BLK}")
        s.A(f"s_add_u32 s{sU}, s{sTX0+tau}, {j*2040}")
        s.x_go(it)

C = Em(); A = C.A
A("s_cmp_ge_u32 s2, 224")
A("s_cbranch_scc1 L_end")
if args.stamps: A("s_memrealtime s[98:99]"); A("s_memtime s[100:101]"); C.names += ["rt0", "t0"]
A(f"s_load_dwordx2 s[{sQ}:{sQ+1}], s[0:1], 8")
A(f"s_load_dwordx2 s[{sS}:{sS+1}], s[0:1], 16")
A(f"s_load_dwordx2 s[{sZ}:{sZ+1}], s[0:1], 24")
A(f"s_load_dwordx2 s[{sX}:{sX+1}], s[0:1], 0")
A(f"s_load_dwordx2 s[{sO}:{sO+1}], s[0:1], 40")
if args.stamps: A(f"s_load_dwordx2 s[{sWS}:{sWS+1}], s[0:1], 56")
vL, vI, vH, vCol, vX, vY, vG = 4, 5, 6, 7, 8, 9, 10
A(f"v_lshrrev_b32 v{vX}, 6, v0")
A(f"v_and_b32 v{vL}, 63, v0")
A(f"v_readfirstlane_b32 s{sW8}, v{vX}")
XR = args.xr; XC = 28//XR
A(f"s_and_b32 s{sTMP}, s2, 7")
A(f"s_lshr_b32 s{sTMP2}, s2, 3")
if args.pf:
    A("s_getpc_b64 s[4:5]")
    A(f"s_lshl_b32 s3, s{sTMP2}, 5")
    A(f"v_and_b32 v2, 3, v0")
    A(f"v_lshl_add_u32 v1, v{vX}, 2, v2")
    A("v_add_u32 v1, s3, v1")
    A("v_and_b32 v1, 255, v1")
    A("v_lshlrev_b32 v1, 7, v1")
    A("v_min_u32 v1, CODE_BYTES, v1")
    C.vm("global_load_dword v3, v1, s[4:5]", ('pf',))
if XR == 1:
    A(f"s_mov_b32 s{sRB}, s{sTMP}"); A(f"s_mov_b32 s{sCB}, s{sTMP2}"); A(f"s_mov_b32 s{sROT}, s{sTMP2}")
else:
    lg2 = XR.bit_length()-1
    A(f"s_and_b32 s{sCB}, s{sTMP}, {XR-1}")
    A(f"s_mul_i32 s{sCB}, s{sCB}, {XC}")
    A(f"s_lshr_b32 s{sROT}, s{sTMP2}, {lg2}")
    A(f"s_add_u32 s{sCB}, s{sCB}, s{sROT}")
    A(f"s_andn2_b32 s{sRB}, s{sTMP}, {XR-1}")
    A(f"s_and_b32 s{sTMP2}, s{sTMP2}, {XR-1}")
    A(f"s_add_u32 s{sRB}, s{sRB}, s{sTMP2}")
if args.rot != 1: A(f"s_mul_i32 s{sROT}, s{sROT}, {args.rot}")
A(f"s_and_b32 s{sSTRIP}, s{sW8}, 3")
A(f"s_lshl_b32 s{sCOL}, s{sCB}, 7")
A(f"s_lshl_b32 s{sTMP2}, s{sSTRIP}, 5")
A(f"s_add_u32 s{sCOL}, s{sCOL}, s{sTMP2}")
for (s, nb) in ((sQ,QBYTES),(sS,SBYTES),(sZ,SBYTES),(sX,XBYTES)):
    A(f"s_mov_b32 s{s+2}, {nb}"); A(f"s_mov_b32 s{s+3}, 0x20000")
A(f"v_lshrrev_b32 v{vH}, 5, v{vL}")
A(f"v_lshrrev_b32 v{vG}, 4, v{vL}")
A(f"v_and_b32 v{vQt}, 7, v{vL}")
A(f"s_lshl_b32 s{sTMP2}, s{sCOL}, 2")
A(f"v_lshl_add_u32 v{vQt}, v{vQt}, 4, s{sTMP2}")
A(f"v_and_b32 v{vCol}, 3, v{vL}"); A(f"v_bfe_u32 v{vY}, v{vL}, 2, 2"); A(f"v_lshl_or_b32 v{vCol}, v{vCol}, 2, v{vY}")
if args.stamps: A(f"s_mov_b32 s{sWS+2}, 0x10000000"); A(f"s_mov_b32 s{sWS+3}, 0x20000")
A(f"s_cmp_ge_u32 s{sW8}, 4")
A("s_cbranch_scc1 L_Y")

def emit_xsetup(E):
    A = E.A
    A(f"v_and_b32 v{vI}, 31, v{vL}")
    A(f"v_mul_u32_u24 v{vDO}, 480, v{vH}")
    A(f"v_lshlrev_b32 v12, 5, v{vH}")
    A(f"v_add_u32 v12, {1920-480}, v12")
    A(f"v_cmp_lt_u32 vcc, 29, v{vI}")
    A(f"s_mul_i32 s{sXB}, s{sRB}, {256*2040}")
    A(f"s_mul_i32 s{sTMP}, s{sSTRIP}, {8*2040}")
    A(f"v_cndmask_b32 v{vDO}, v{vDO}, v12, vcc")
    A(f"v_lshl_add_u32 v{vDO}, v{vI}, 4, v{vDO}")
    A(f"s_add_u32 s{sXB}, s{sXB}, s{sTMP}")
    A(f"s_mul_i32 s{sL1}, s{sSTRIP}, {8*BLK}")
def emit_tx(E, tau):
    A = E.A
    A(f"s_add_u32 s{sTX0+tau}, s{sROT}, {tau}"); A(f"s_and_b32 s{sTX0+tau}, s{sTX0+tau}, 7")
    A(f"s_mul_i32 s{sTX0+tau}, s{sTX0+tau}, {32*2040}"); A(f"s_add_u32 s{sTX0+tau}, s{sTX0+tau}, s{sXB}")
def emit_dy(E):
    A = E.A
    A(f"v_and_b32 v12, 15, v{vL}")
    A(f"v_mul_u32_u24 v{vDY}, 240, v{vG}")
    A(f"v_lshl_add_u32 v{vDY}, v12, 4, v{vDY}")
    A(f"v_cmp_eq_u32 vcc, 15, v12")
    A(f"v_add_u32 v{vDY}, 960, v{vDY}")
    A(f"v_lshlrev_b32 v13, 4, v{vG}")
    A(f"v_add_u32 v13, 1984, v13")
    A(f"v_min_u32 v13, 2024, v13")
    A(f"v_cndmask_b32 v{vDY}, v{vDY}, v13, vcc")
def emit_consts(E):
    A = E.A
    A(f"v_mov_b32 v{vMA}, 0x0007000e"); A(f"v_mov_b32 v{vMB}, 0x00380070"); A(f"v_mov_b32 v{vMC}, 0x01c00380")
    A(f"s_mov_b32 s{sK7}, {hex((127+17) << 23)}"); A(f"s_mov_b32 s{sM30}, 0x3fffffff")

def mix(dst, src, hi, pos):
    return f"v_fma_mix_f32 v{dst}, v{src}, v{vM[pos]}, -v{vC} op_sel:[{hi},0,0] op_sel_hi:[1,0,0]"
TR = [vT[0], vT[1], vA_, vT[2], vB_]
FL = [(0,0,1),(1,0,4),(2,0,7),(3,0,1),(4,0,4),(0,1,0),(1,1,3),(2,1,6),(3,1,0),(4,1,3)]
class Deq:
    def __init__(s, E): s.E = E; s.V = deque(); s.pos = 0; s.produced = {}; s.issued = set(); s.rawq = deque()
    def vop(s, text, needs=(), prod=None): s.V.append((text, tuple(needs), prod))
    def dword(s, p, nd, d0, ne):
        vop = s.vop
        vop(f"v_add_u32 v{vA_}, v{p}, v{p}", nd); vop(f"v_lshrrev_b32 v{vB_}, 8, v{p}", nd)
        vop(f"v_and_b32 v{TR[0]}, v{vMA}, v{vA_}"); vop(f"v_and_b32 v{TR[1]}, v{vMB}, v{vA_}")
        extra = {0: f"v_and_b32 v{TR[2]}, v{vMC}, v{vA_}", 1: f"v_and_b32 v{TR[3]}, v{vMA}, v{vB_}", 2: f"v_and_b32 v{TR[4]}, v{vMB}, v{vB_}"}
        def cvt(e): vop(f"v_cvt_pk_bf16_f32 v{d0+e}, v{vF[(2*e)%4]}, v{vF[(2*e+1)%4]}", prod=d0+e)
        for e in range(ne):
            for k in (2*e, 2*e+1):
                ti, hi, pos = FL[k]; vop(mix(vF[k%4], TR[ti], hi, pos))
                if k in extra: vop(extra[k])
            if e > 0: cvt(e-1)
        cvt(ne-1)
    def consts(s, rs, rz, nd):
        s.vop(f"v_mul_f32 v{vM[7]}, s{sK7}, v{rs}", nd); s.vop(f"v_mul_f32 v{vC}, v{rz}, v{rs}", nd)
        for (pa, pb, k) in ((6,7,'2.0'),(4,6,'4.0'),(3,4,'2.0'),(1,3,'4.0'),(0,1,'2.0')): s.vop(f"v_mul_f32 v{vM[pa]}, {k}, v{vM[pb]}")
    def finalize(s, rawreg):
        s.last = {}; s.first = {}; s.wpos = {}
        for i, (_, nd, prod) in enumerate(s.V):
            for it in nd: s.last[it] = i; s.first.setdefault(it, i)
            if prod is not None: s.wpos.setdefault(prod, i)
        for it, regs in rawreg.items():
            for r in regs:
                if r in s.wpos: assert s.wpos[r] > s.last[it], (it, r)
        s.n = len(s.V)
    def emit(s):
        while s.rawq and s.rawq[0][0] <= s.pos: s.rawq.popleft()[1]()
        text, nd, prod = s.V.popleft()
        for it in nd:
            assert it in s.issued, it
            s.E.wait(ltag=it, vtag=it)
        s.E.A(text); s.pos += 1
        if prod is not None: s.produced[prod] = len(s.E.L)-1
def w_dma(E, i, so, mask48=False):
    E.A(f"s_add_u32 m0, s{sXR}, {i*1024}"); E.A(f"s_mov_b32 s{sLQ}, {so}")
    if mask48: E.A("s_mov_b32 exec_hi, 0xffff")
    E.vm(f"buffer_load_dwordx4 v{vQt if i == 6 else vQm}, s[{sQ}:{sQ+3}], s{sLQ} offen lds", ('w', i))
    if mask48: E.A("s_mov_b32 exec_hi, -1")

O = Em(); O.vmq = list(C.vmq); O.names = list(C.names); A = O.A
A("s_setprio 2")
A(f"s_mul_i32 s{sXR}, s{sSTRIP}, {XS}"); A(f"s_add_u32 s{sXR}, s{sXR}, {SPARE0}")
A(f"v_bfe_u32 v11, v{vL}, 3, 1")
A(f"v_mad_u32_u24 v{vY}, v11, 24, v{vG}")
A(f"v_mul_u32_u24 v{vQm}, 14336, v{vY}")
A(f"v_add_u32 v{vQm}, v{vQm}, v{vQt}")
A(f"v_bfe_u32 v{vY}, v{vL}, 4, 1")
A(f"v_lshl_or_b32 v{vCol}, v{vCol}, 1, v{vY}")
A(f"v_add_u32 v{vY}, s{sCOL}, v{vCol}")
A(f"v_mul_u32_u24 v{vSO}, {4*7168}, v{vH}")
A(f"v_lshl_add_u32 v{vSO}, v{vY}, 1, v{vSO}")
raw = []
for g in range(5): raw += [('S',g),('Z',g)] + [('q',6*g+k) for k in range(6 if g < 4 else 4)]
rr = {it: 90+i for i, it in enumerate(raw)}
for g in range(2): A(f"v_mov_b32 v{rr[('S',g)]}, 0"); A(f"v_mov_b32 v{rr[('Z',g)]}, 0")
A(f"s_movk_i32 s{sLS}, 7168")
D = Deq(O)
def pt(pj): return ('p', pj >> 1)
for g in range(5):
    D.consts(rr[('S',g)], rr[('Z',g)], [('S',g),('Z',g)])
    if g < 4:
        for pj in range(6*g, 6*g+6): D.dword(rr[('q',pj)], [pt(pj)], 5*pj, 5)
    else:
        e0, e1, e2, e3 = [rr[('q',24+k)] for k in range(4)]; nd = [pt(24), pt(26)]
        D.vop(f"v_and_b32 v{vS2}, s{sM30}, v{e0}", nd); D.vop(f"v_and_b32 v{vZ2}, s{sM30}, v{e1}", nd)
        D.vop(f"v_lshrrev_b32 v{vS2}, v{vSH1}, v{vS2}"); D.vop(f"v_lshrrev_b32 v{vZ2}, v{vSH1}, v{vZ2}")
        D.vop(f"v_lshl_or_b32 v{vS2}, v{e1}, v{vSH2}, v{vS2}", nd); D.vop(f"v_lshl_or_b32 v{vZ2}, v{e2}, v{vSH2}, v{vZ2}", nd)
        D.dword(vS2, [], 120, 5); D.dword(vZ2, [], 125, 3)
rawregs = {('p', k): [rr[('q',2*k)], rr[('q',2*k+1)]] for k in range(14)}
for g in range(5): rawregs[('S',g)] = [rr[('S',g)]]; rawregs[('Z',g)] = [rr[('Z',g)]]
D.finalize(rawregs)
def o_sz(g):
    if g < 2:
        so = f"s{sLS}" if g else "0"
        O.vm(f"buffer_load_short_d16_hi v{rr[('S',g)]}, v{vSO}, s[{sS}:{sS+3}], {so} offen", ('S',g))
        O.vm(f"buffer_load_short_d16_hi v{rr[('Z',g)]}, v{vSO}, s[{sZ}:{sZ+3}], {so} offen", ('Z',g))
    else:
        O.wait(vtag=('osz',))
        O.lg(f"ds_read_u16_d16_hi v{rr[('S',g)]}, v{vSO} offset:{6912 + (g-2)*64}", ('S',g))
        O.lg(f"ds_read_u16_d16_hi v{rr[('Z',g)]}, v{vSO} offset:{7296 + (g-2)*64}", ('Z',g))
    D.issued.update([('S',g),('Z',g)])
def o_w(i): w_dma(O, i, (4*i if i < 6 else 96)*14336, i == 6)
def o_rd(k):
    i = k >> 1; r = rr[('q',2*k)]; O.wait(vtag=('w', i))
    o0 = 4*i + 2*(k & 1)
    O.lg(f"ds_read2st64_b32 v[{r}:{r+1}], v{vWrd} offset0:{o0} offset1:{o0+1}", ('p', k)); D.issued.add(('p', k))
def o_osz():
    O.A(f"s_add_u32 m0, s{sXR}, 6912"); O.A("s_mov_b64 exec, 0xffffff")
    O.vm(f"buffer_load_dwordx4 v{vOSZ}, s[{sS}:{sS+3}], 0 offen lds", ('osz0',))
    O.A(f"s_add_u32 m0, s{sXR}, 7296"); O.A("s_nop 0")
    O.vm(f"buffer_load_dwordx4 v{vOSZ}, s[{sZ}:{sZ+3}], 0 offen lds", ('osz',))
    O.A("s_mov_b64 exec, -1")
A("s_waitcnt lgkmcnt(0)")
if args.stamps: A(f"s_mov_b32 s{sST}, s98"); A(f"s_mov_b32 s{sST+1}, s100")
o_w(0); o_sz(0); o_w(1); o_sz(1)
A(f"v_add_u32 v12, v11, v{vG}")
A(f"v_mul_u32_u24 v12, 14336, v12")
A(f"v_add_u32 v{vQt}, v{vQt}, v12")
o_w(2)
GC = sum(g << (5*i) for i, g in enumerate([2,3,16,6,7,16]))
A(f"v_lshrrev_b32 v12, 2, v{vL}"); A(f"v_min_u32 v12, 5, v12"); A(f"v_mul_u32_u24 v12, 5, v12")
A(f"s_mov_b32 s{sTMP}, {GC}"); A(f"v_lshrrev_b32 v12, v12, s{sTMP}"); A(f"v_and_b32 v12, 31, v12")
o_w(3)
A(f"v_mul_u32_u24 v12, 7168, v12")
A(f"v_and_b32 v13, 3, v{vL}")
A(f"s_lshl_b32 s{sTMP2}, s{sCOL}, 1")
A(f"v_lshl_add_u32 v13, v13, 4, s{sTMP2}")
A(f"v_add_u32 v{vOSZ}, v12, v13")
o_osz()
A(f"v_lshlrev_b32 v{vWrd}, 2, v{vCol}")
A(f"v_lshl_add_u32 v{vWrd}, v{vH}, 7, v{vWrd}")
A(f"v_add_u32 v{vWrd}, s{sXR}, v{vWrd}")
emit_consts(O)
o_w(4)
for g in range(2,5): A(f"v_mov_b32 v{rr[('S',g)]}, 0"); A(f"v_mov_b32 v{rr[('Z',g)]}, 0")
A(f"v_mul_u32_u24 v{vSH1}, 18, v{vH}")
A(f"v_sub_u32 v{vSH2}, 30, v{vSH1}")
o_w(5)
A(f"v_mul_u32_u24 v{vSO}, 192, v{vH}")
A(f"v_lshl_add_u32 v{vSO}, v{vCol}, 1, v{vSO}")
A(f"v_add_u32 v{vSO}, s{sXR}, v{vSO}")
o_w(6)
emit_xsetup(O)
emit_dy(O)
A(f"v_mul_u32_u24 v{vR[0]}, {BLK}, v{vI}")
A(f"v_lshl_add_u32 v{vR[0]}, v{vH}, 9, v{vR[0]}")
A(f"v_add_u32 v{vR[1]}, {2*PAIR}, v{vR[0]}")
A(f"v_and_b32 v12, 15, v{vL}")
A(f"v_bfe_u32 v13, v{vL}, 4, 1")
A(f"s_lshl_b32 s{sTMP2}, s{sSTRIP}, 12"); A(f"s_add_u32 s{sTMP2}, s{sTMP2}, {6*UNIT}")
A(f"v_lshl_add_u32 v{vP}, v12, 4, s{sTMP2}")
A(f"v_lshl_add_u32 v{vP}, v13, 10, v{vP}")
A(f"v_lshl_add_u32 v{vP}, v{vH}, 8, v{vP}")
otx = deque(range(8))
sched = [(max(0, D.first[('p', k)] - args.ord), (lambda k=k: o_rd(k))) for k in range(14)]
sched += [(D.first[('S', g)] - args.ord, (lambda g=g: o_sz(g))) for g in (2,3,4)]
D.rawq = deque(sorted(sched, key=lambda t: t[0]))
O.stamp("issued")
VA = IL(args.va)
prodat = {t: max(D.wpos[4*t+k] for k in range(4)) + 3 for t in range(32)}
ev = []; time = 0.0; vi = 0; nk = [0,0]; barT = {}; lastM = -99; Q = []
while vi < D.n or any(k < 32 for k in nk):
    j = len(barT)
    if j < 2 and (time >= VA[j] or (vi >= D.n and (j == 0 or nk[0] >= 28))): barT[j] = time; ev.append(('B', j)); time += 20; continue
    cand = [j for j in range(2) if j in barT and time >= barT[j] + 110 and nk[j] < 32 and prodat[nk[j]] <= vi + (99 if vi >= D.n else 0)]
    if cand and (time - lastM >= 30 or vi >= D.n):
        j = cand[0]; time = max(time, lastM + 32); ev.append(('M',)); Q.append((j, nk[j])); nk[j] += 1; lastM = time; time += args.cm
    elif vi < D.n: ev.append(('V',)); vi += 1; time += args.cv
    else: time += 4
print(f"phase A model: {time:.0f} cycles")
for n in range(1, NSL):
    if SLOTS[n][0] == 'S': Q += [(int(SLOTS[n][1]), t) for t in range(32)]
open_t = set(); rp = [0]; mp = [0]; lastm = {}
def oacc(tau):
    i = tau % NOACC
    return ('a', 32 + 16*i) if i < 3 else ('v', 128 + 16*(i-3))
def o_read(mx=1):
    n = 0
    while n < mx and rp[0] < len(Q) and rp[0] - mp[0] < args.D + 1 and Q[rp[0]][0] in open_t:
        tau, t = Q[rp[0]]; p = XPAIR[f"S{tau}"]; f = 4*(rp[0] % 8)
        O.lg(f"ds_read_b128 a[{f}:{f+3}], v{vR[p >> 1]} offset:{(p & 1)*PAIR + 16*t}", ('f', rp[0])); rp[0] += 1; n += 1
def o_mfma():
    i = mp[0]; tau, t = Q[i]; assert i < rp[0], "frag not read"
    if ('f', i) in O.lgq: O.wait(ltag=('f', min(i+1, rp[0]-1)) if rp[0] - i > 5 else ('f', i))
    dist = len(O.L) - 1 - max(D.produced[4*t+k] for k in range(4))
    if dist < 2: O.A(f"s_nop {1-dist}")
    fl, a = oacc(tau); f = 4*(i % 8)
    c = "0" if t == 0 else f"{fl}[{a}:{a+15}]"
    O.A(f"v_mfma_f32_32x32x16_bf16 {fl}[{a}:{a+15}], a[{f}:{f+3}], v[{4*t}:{4*t+3}], {c}")
    mp[0] += 1; lastm[tau] = len(O.L)-1
def pwrites(p):
    fl, a0 = oacc(p)
    return [f"ds_write_b128 v{vP}, {fl}[{a0+4*a}:{a0+4*a+3}] offset:{(PREG[p]-6)*UNIT + (a>>1)*2048 + (a&1)*512}" for a in range(4)]
first = True; cur = [0]; fillq = deque(); pend = [None]; after_last = [None]; run_slot = [0]
def o_need_tx(tau):
    if tau in otx: otx.remove(tau); emit_tx(O, tau)
def o_load_interval(n):
    ws = [('w', w, p) for p in range(8) if PW[p] == n for w in pwrites(p)]
    xs = [('x', it) for it in DPLAN.get(n, []) if downer(n, it[1]) == 'O']
    while ws or xs:
        for _ in range(args.wi if args.wi else 99):
            if ws: fillq.append(ws.pop(0))
        if xs: fillq.append(xs.pop(0))
def o_fill(now=False):
    it = fillq[0]
    if it[0] == 'w':
        done = sum(1 for q in Q[:mp[0]] if q[0] == it[2]) == 32
        if not now and (not done or len(O.L) < lastm[it[2]] + 13): return
        assert done
        if len(O.L) < lastm[it[2]] + 13: O.A(f"s_nop {lastm[it[2]] + 13 - len(O.L) - 1}")
        fillq.popleft(); O.lg(it[1], ('pw',))
    else:
        fillq.popleft(); o_need_tx(int(it[1][0][1]))
        if now: O.x_full(it[1])
        else: O.x_pre(it[1]); pend[0] = it[1]
def o_flush():
    if pend[0]: O.x_go(pend[0]); pend[0] = None
    while fillq: o_fill(True)
def o_bar(n):
    o_flush(); O.barrier(SLOTS[n]); cur[0] = n; o_load_interval(n)
    if SLOTS[n][0] == 'S': open_t.add(int(SLOTS[n][1]))
def o_after_mfma(endidx):
    if pend[0]: O.x_go(pend[0]); pend[0] = None
    if rp[0] >= endidx and cur[0] == run_slot[0] and (len(D.V) <= args.b1v or mp[0] >= endidx - 3):
        if after_last[0] is None: after_last[0] = mp[0]
        if mp[0] > after_last[0] or not O.lgq:
            after_last[0] = None; o_bar(cur[0]+1)
            if SLOTS[cur[0]][0] != 'S': O.A("s_setprio 3")
    o_read(2)
    if fillq and cur[0] >= 1 and SLOTS[cur[0]][0] == 'S' and (fillq[0][0] == 'w' or mp[0] % args.oc == 0): o_fill()
for e in ev:
    if e[0] == 'V':
        D.emit()
        if first: O.stamp("firstW"); first = False
        if D.pos % 2 == 0: o_read(1)
    elif e[0] == 'B':
        if args.pre: O.stamp(f"pa{e[1]}")
        O.barrier(f"S{e[1]}"); open_t.add(e[1])
        if not args.pre: O.stamp(f"a{e[1]}")
        o_read(2)
    else: o_mfma(); o_after_mfma(64)
assert not D.V and not D.rawq and cur[0] == 1
O.stamp("A"); OA_END = len(O.L)
for n in range(1, NSL):
    if SLOTS[n][0] == 'S':
        run_slot[0] = n; end = mp[0] + 32
        if SLOTS[n-1][0] == 'F': O.A("s_setprio 2"); o_read(8)
        while mp[0] < end: o_mfma(); o_after_mfma(end)
        assert cur[0] == n+1
    else:
        if SLOTS[n-1][0] != 'F': O.A("s_setprio 0")
        if n+1 < NSL: o_bar(n+1)
        else: o_flush()
    if n in (1,2,3,4,5,7): O.stamp(f"s{n}")
O.A("s_branch L_fin")

Y = Em(); Y.vmq = list(C.vmq); Y.names = list(C.names); A = Y.A
emit_xsetup(Y); emit_tx(Y, 0)
S0 = len(Y.L)
emit_tx(Y, 1)
assert XPAIR['S3'] == 0
A(f"s_mov_b32 s{sXR}, s{sL1}")
A(f"v_bfe_u32 v11, v{vL}, 3, 2")
A(f"v_mad_u32_u24 v{vY}, v11, 12, v{vH}")
A(f"v_mul_u32_u24 v{vQm}, 14336, v{vY}")
A(f"v_add_u32 v{vQm}, v{vQm}, v{vQt}")
A(f"v_add_u32 v12, 1, v11"); A(f"v_lshrrev_b32 v12, 1, v12"); A(f"v_add_u32 v12, v12, v{vH}")
A(f"v_mul_u32_u24 v12, 14336, v12")
A(f"v_add_u32 v{vQt}, v{vQt}, v12")
A(f"s_lshl_b32 s{sTMP2}, s{sCOL}, 1")
A(f"v_lshl_add_u32 v{vOSZ}, v{vCol}, 2, s{sTMP2}")
A(f"v_mul_u32_u24 v{vSO}, {2*7168}, v{vG}")
A(f"v_add_u32 v{vSO}, v{vSO}, v{vOSZ}")
A(f"v_lshlrev_b32 v{vWrd}, 3, v{vCol}")
A(f"v_lshl_add_u32 v{vWrd}, v{vG}, 7, v{vWrd}")
A(f"v_add_u32 v{vWrd}, s{sXR}, v{vWrd}")
emit_consts(Y)
A(f"s_mov_b32 s{sHI}, 0xffff0000"); A(f"s_mov_b32 s{sP1}, 0"); A(f"s_mov_b32 s{sP1+1}, 0xffff0000")
A(f"v_lshlrev_b32 v12, 3, v{vG}"); A(f"s_mov_b32 s{sTMP}, 0x12180006"); A(f"v_lshrrev_b32 v{vSH1}, v12, s{sTMP}"); A(f"v_and_b32 v{vSH1}, 0xff, v{vSH1}")
A(f"v_sub_u32 v{vSH2}, 30, v{vSH1}")
emit_dy(Y)
A(f"v_and_b32 v12, 15, v{vL}")
A(f"v_mul_u32_u24 v{vR[0]}, {BLK}, v12")
A(f"v_lshl_add_u32 v{vR[0]}, v{vG}, 8, v{vR[0]}")
A(f"v_add_u32 v{vR[1]}, {2*PAIR}, v{vR[0]}")
A(f"s_lshl_b32 s{sTMP}, s{sSTRIP}, 12"); A(f"s_add_u32 s{sTMP}, s{sTMP}, {6*UNIT}")
A(f"v_lshl_add_u32 v{vP}, v{vL}, 4, s{sTMP}")
A(f"v_lshrrev_b32 v12, 2, v{vL}")
A(f"v_mul_u32_u24 v{vOUT}, 7168, v12")
A(f"v_and_b32 v12, 3, v{vL}")
A(f"v_lshl_add_u32 v{vOUT}, v12, 4, v{vOUT}")
A(f"v_add_u32 v{vOUT}, s{sTMP2}, v{vOUT}")
A(f"v_add_u32 v{vOUT2}, {16*7168}, v{vOUT}")
A(f"s_mov_b32 s{sO+2}, {OBYTES}"); A(f"s_mov_b32 s{sO+3}, 0x20000")
A(f"s_mul_i32 s{sOB}, s{sRB}, {256*7168}")
for tau in range(2, 8): emit_tx(Y, tau)
for tau in range(8):
    A(f"s_add_u32 s{sTO0+tau}, s{sROT}, {tau}"); A(f"s_and_b32 s{sTO0+tau}, s{sTO0+tau}, 7")
    A(f"s_mul_i32 s{sTO0+tau}, s{sTO0+tau}, {32*7168}"); A(f"s_add_u32 s{sTO0+tau}, s{sTO0+tau}, s{sOB}")
code = Y.L[S0:]; del Y.L[S0:]
DY = Deq(Y)
yq = {}
for j in range(6): yq[j] = 32 + 2*j
for j in range(6, 12): yq[j] = 112 + 2*(j-6)
yq[12] = 124; yq[13] = 126
ysz = {0: (30, 31), 1: (110, 111), 2: (vS2, vZ2)}
def y_consts(g, c):
    rs, rz = ysz[g]; nd = [('S',g),('Z',g)]
    if c == 0:
        DY.vop(f"v_lshlrev_b32 v{vT[0]}, 16, v{rs}", nd); DY.vop(f"v_lshlrev_b32 v{vT[1]}, 16, v{rz}", nd)
    else:
        DY.vop(f"v_and_b32 v{vT[0]}, s{sHI}, v{rs}", nd); DY.vop(f"v_and_b32 v{vT[1]}, s{sHI}, v{rz}", nd)
    DY.consts(vT[0], vT[1], [])
for g in range(2):
    for c in range(2):
        y_consts(g, c)
        for j in range(6*g, 6*g+6): DY.dword(yq[j]+c, [('p', j)], 64*c + 5*j, 5)
for c in range(2):
    y_consts(2, c); nd = [('p',12),('p',13)]
    e0, e1 = yq[12]+c, yq[13]+c
    DY.vop(f"v_and_b32 v{vT[0]}, s{sM30}, v{e0}", nd); DY.vop(f"v_lshrrev_b32 v{vT[0]}, v{vSH1}, v{vT[0]}")
    DY.vop(f"v_lshl_or_b32 v{vT[0]}, v{e1}, v{vSH2}, v{vT[0]}", nd)
    DY.dword(vT[0], [], 64*c + 60, 4)
DY.vop("\n    ".join([f"s_mov_b64 exec, s[{sP1}:{sP1+1}]"] + [x for b in (60, 124) for x in (f"v_mov_b32 v{b+2}, v{b}", f"v_mov_b32 v{b+3}, v{b+1}", f"v_mov_b32 v{b}, 0", f"v_mov_b32 v{b+1}, 0")] + ["s_mov_b64 exec, -1", "s_nop 1"]))
rawregs = {('p', j): [yq[j], yq[j]+1] for j in range(14)}
for g in range(3): rawregs[('S',g)] = [ysz[g][0]]; rawregs[('Z',g)] = [ysz[g][1]]
for j in range(6, 12): rawregs[('p', j)] = [yq[j]+1]
DY.finalize(rawregs)
def y_sz(g):
    Y.A(f"s_mov_b32 s{sLS}, {(8+g if g < 2 else 16)*7168}"); vo = vSO if g < 2 else vOSZ
    Y.vm(f"buffer_load_dword v{ysz[g][0]}, v{vo}, s[{sS}:{sS+3}], s{sLS} offen", ('S',g))
    Y.vm(f"buffer_load_dword v{ysz[g][1]}, v{vo}, s[{sZ}:{sZ+3}], s{sLS} offen", ('Z',g))
    DY.issued.update([('S',g),('Z',g)])
def y_w(i): w_dma(Y, i, (48+2*i if i < 6 else 99)*14336)
def y_rd(j):
    i = j >> 1; Y.wait(vtag=('w', i))
    Y.lg(f"ds_read_b64 v[{yq[j]}:{yq[j]+1}], v{vWrd} offset:{i*1024 + (j&1)*512}", ('p', j)); DY.issued.add(('p', j))
YI = IL(args.yi); assert len(YI) == NY0-1
nvA = DY.n - sum(YI); assert nvA >= 0
X = lambda sl, j: (lambda: Y.x_full((sl, j)))
G = [[X(f"S{t}", j) for j in range(8)] for t in range(4)]
yW = [(lambda i=i: y_w(i)) for i in range(7)] + [(lambda g=g: y_sz(g)) for g in range(3)]
seq = []; ends = []
for t in range(3):
    seq += G[t]; ends.append(len(seq))
    if t == args.ywp: seq += yW
pre_n = int(len(code)*args.ypre/100); Y.L.extend(code[:pre_n]); code = code[pre_n:]
A("s_waitcnt lgkmcnt(0)")
if args.stamps: A(f"s_mov_b32 s{sST}, s98"); A(f"s_mov_b32 s{sST+1}, s100")
step = -(-len(code)//8); nb = 0
for i, f in enumerate(seq):
    f()
    if i < 8: Y.L.extend(code[i*step:(i+1)*step])
    if i == 7: Y.stamp("issued")
    while nb < 2 and i+1 >= min(ends[nb] + args.ylead, len(seq)):
        if args.pre:
            Y.wait(vtag=('x', f"S{nb}", 7)); Y.stamp(f"pa{nb}")
        Y.barrier(f"S{nb}")
        if not args.pre: Y.stamp(f"a{nb}")
        nb += 1
for j in range(14): y_rd(j)
Y.wait(lall=True)
for f in G[3]:
    f()
    for _ in range(nvA//8): DY.emit()
while DY.pos < nvA: DY.emit()
Y.stamp("preb1")
Y.barrier(SLOTS[1])
for n in range(1, NY0):
    mine = [it for it in DPLAN[n] if downer(n, it[1]) == 'Y']
    tgt = DY.pos + YI[n-1]
    for it in mine:
        for _ in range(args.yu):
            if DY.pos < tgt: DY.emit()
        Y.x_full(it)
    while DY.pos < tgt: DY.emit()
    Y.stamp(f"i{n}")
    Y.barrier(SLOTS[n+1])
assert not DY.V
YF0 = len(Y.L)
RKA, RKB, RKC = IL(args.rka), IL(args.rkb), IL(args.rkc)
fsets = [(n, mt, hb) for n in range(NSL) if SLOTS[n][0] == 'F' for mt in range(2) for hb in range(2)]
E = deque(); iss = {}; uid = [0]; acc_free = [0,1,2]; accof = {}; CI = []; fdone = set(); STQ = []; epn = [0]
def acc8(s): return 128 + 8*s
def e_add(kind, text, minpos=0, dep=None, done=None):
    uid[0] += 1; E.append((kind, text, uid[0], minpos, dep, done)); return uid[0]
def e_min(e):
    m = e[3]
    for d in (e[4] or []): m = max(m, iss[d] + 3)
    return m
def emit_st(): Y.vm(STQ.pop(0)[1], ('st',))
def emit_e():
    e = E.popleft(); m = e_min(e)
    if e[0] == 'q': STQ.append(e[1]); return
    if e[0] == 'chk':
        if any(p == e[1] for p, _ in STQ):
            while any(p == e[1] for p, _ in STQ): emit_st()
            Y.A("s_nop 0")
        return
    if len(Y.L) < m: Y.A(f"s_nop {m - len(Y.L) - 1}")
    Y.A(e[1]); iss[e[2]] = len(Y.L)-1
    if e[5]: e[5]()
STM = args.stmod.replace('+',' ')
def push_ep(slot, tau, mt, pos):
    a = acc8(slot); P = 152 + 4*(epn[0] % 3); epn[0] += 1; T0, T1 = 164, 165
    e_add('chk', P)
    cv = {}
    t0 = e_add('v', f"v_cvt_pk_bf16_f32 v{T0}, v{a}, v{a+4}", pos+9); t1 = e_add('v', f"v_cvt_pk_bf16_f32 v{T1}, v{a+1}, v{a+5}")
    for r in (2, 3, 0, 1): cv[r] = e_add('v', f"v_cvt_pk_bf16_f32 v{P+r}, v{a+r}, v{a+4+r}", done=(lambda: acc_free.append(slot)) if r == 1 else None)
    d = lambda dst, src, op, m: f"v_mov_b32_dpp v{dst}, v{src} {op} row_mask:0xf bank_mask:{m}"
    a0 = e_add('v', d(P+0, P+2, 'row_ror:8', '0xc'), dep=[cv[2], cv[0]])
    a1 = e_add('v', d(P+1, P+3, 'row_ror:8', '0xc'), dep=[cv[3], cv[1]])
    a2 = e_add('v', d(P+2, T0, 'row_ror:8', '0x3'), dep=[t0])
    a3 = e_add('v', d(P+3, T1, 'row_ror:8', '0x3'), dep=[t1])
    u0 = e_add('v', f"v_mov_b32 v{T0}, v{P+0}"); u1 = e_add('v', f"v_mov_b32 v{T1}, v{P+2}")
    e_add('v', d(P+0, P+1, 'row_shr:4', '0xa'), dep=[a1, a0])
    e_add('v', d(P+2, P+3, 'row_shr:4', '0xa'), dep=[a3, a2])
    e_add('v', d(P+1, T0, 'row_shl:4', '0x5'), dep=[u0])
    e_add('v', d(P+3, T1, 'row_shl:4', '0x5'), dep=[u1])
    e_add('q', (P, f"buffer_store_dwordx4 v[{P}:{P+3}], v{vOUT if mt == 0 else vOUT2}, s[{sO}:{sO+3}], s{sTO0+tau} offen {STM}"))
def yfrag(si, tp): return 32*(si % 2) + 4*tp
def y_read(si, tp):
    n, mt, hb = fsets[si]; p = XPAIR[SLOTS[n]]; f = yfrag(si, tp); fdone.add((si, tp))
    Y.lg(f"ds_read_b128 a[{f}:{f+3}], v{vR[p >> 1]} offset:{(p & 1)*PAIR + mt*UNIT + 16*(8*hb+tp)}", ('g', si, tp))
def y_ci(n, mt):
    while not acc_free: emit_e()
    s = acc_free.pop(0); accof[(n, mt)] = s; tau = int(SLOTS[n][1])
    for c in range(2): CI.append((f"ds_read_b128 v[{acc8(s)+4*c}:{acc8(s)+4*c+3}], v{vP} offset:{(PREG[tau]-6)*UNIT + mt*2048 + c*1024}", ('ci', n, mt, c)))
def nbytes(line):
    t = line.strip()
    return 4 if (t.startswith('s_') or t.startswith('v_mov_b32 v')) else 8
for si, (n, mt, hb) in enumerate(fsets):
    tau = int(SLOTS[n][1]); sidx = 2*mt + hb; lastset = sidx == 3
    cont = n+1 < NSL and SLOTS[n+1][0] == 'F'
    fresh = sidx == 0 and SLOTS[n-1][0] != 'F'
    if fresh:
        Y.A("s_setprio 2"); y_ci(n, 0)
        Y.lg(*CI.pop(0))
        for tp in range(8): y_read(si, tp)
        Y.lg(*CI.pop(0))
    if sidx == 1: y_ci(n, 1)
    wg = 2 if sidx == 0 else args.wg
    for c in range(2):
        for tp in range(8):
            T = 8*hb + tp; k = 8*c + tp
            if c == 0 and tp % wg == 0: Y.wait(ltag=('g', si, tp+wg-1))
            a = acc8(accof[(n, mt)]) + 4*c; f = yfrag(si, tp); assert (si, tp) in fdone
            if T == 0: assert not any(x[1][1:3] == (n, mt) for x in CI); Y.wait(ltag=('ci', n, mt, c))
            Y.A(f"v_mfma_f32_16x16x32_bf16 v[{a}:{a+3}], a[{f}:{f+3}], v[{64*c+4*T}:{64*c+4*T+3}], v[{a}:{a+3}]")
            mpos = len(Y.L); full = False
            if hb == 1 and k == 15: push_ep(accof[(n, mt)], tau, mt, len(Y.L)-1)
            if sidx == args.bs and k == args.bk and n+1 < NSL:
                assert args.bs == 3 or all((si+1, j) in fdone for j in range(8))
                Y.barrier(SLOTS[n+1]); full = True
                if not cont: Y.A("s_setprio 3")
            if lastset and cont and k == max(RKB[0]-2, args.bk if args.bs == 3 else 0): y_ci(n+1, 0)
            RK = RKB if lastset else (RKC if sidx == 2 else RKA)
            if not lastset or cont:
                for j in range(8):
                    if RK[j] == k: y_read(si+1, j)
            used = lambda: sum(nbytes(x) for x in Y.L[mpos:])
            if CI and not full and used() < 8: Y.lg(*CI.pop(0))
            quiet = args.sz0 <= 16*sidx + k <= args.sz1 or n >= NSL-2
            if STQ and quiet and not full and len(Y.L) == mpos: emit_st(); full = True
            while E and E[0][0] in ('q', 'chk'): emit_e()
            while not full and E and E[0][0] == 'v' and len(Y.L) >= e_min(E[0]) and used() + nbytes(E[0][1]) <= args.capb: emit_e()
            while E and E[0][0] == 'q': emit_e()
    if lastset and n in (9, 11): Y.stamp(f"s{n}")
    if lastset and n+1 < NSL and not cont:
        m = n+1
        while SLOTS[m][0] != 'F':
            Y.A("s_setprio 0")
            for it in DPLAN.get(m, []):
                if downer(m, it[1]) == 'Y':
                    Y.x_full(it)
                    for _ in range(3):
                        if E: emit_e()
            while E: emit_e()
            while STQ: emit_st()
            Y.barrier(SLOTS[m+1]); m += 1
while E: emit_e()
while STQ: emit_st()
assert O.nbar == Y.nbar, (O.nbar, Y.nbar)

dbg = args.dbg.split(',')
def drop(E_, pred, start=0): E_.L[:] = [x for i, x in enumerate(E_.L) if not (i >= start and pred(x))]
if 'nopw' in dbg: drop(O, lambda x: 'ds_write' in x)
if 'nost' in dbg: drop(Y, lambda x: 'buffer_store' in x)
if 'noep' in dbg: drop(Y, lambda x: x.strip().startswith('v_') and 'mfma' not in x, YF0)
F = Em(); A = F.A
if args.stamps:
    nn = max(len(O.names), len(Y.names))
    O.L.pop()
    for Em_ in (O, Y):
        while len(Em_.names) < nn: Em_.stamp("pad")
        Em_.stamp("end")
    O.A("s_branch L_fin")
    A("s_waitcnt vmcnt(0)")
    A("s_memrealtime s[6:7]"); A("s_waitcnt lgkmcnt(0)"); A(f"s_mov_b32 s{sST+nn+1}, s6")
    A(f"s_lshl_b32 s{sTMP}, s2, 3"); A(f"s_add_u32 s{sTMP}, s{sTMP}, s{sW8}"); A(f"s_mul_i32 s{sTMP}, s{sTMP}, {16*8}")
    A("v_mov_b32 v2, 0"); A("v_mov_b32 v1, 0")
    for i in range(nn+2):
        A(f"v_mov_b32 v0, s{sST+i}")
        A(f"buffer_store_dwordx2 v[0:1], v2, s[{sWS}:{sWS+3}], s{sTMP} offen offset:{8*i}")
        A("s_waitcnt vmcnt(0)")
    open(args.o[:-2] + ".names", "w").write(" ".join(O.names + ["rt1"]) + "\n" + " ".join(Y.names + ["rt1"]))
hdr = open('standalone__weight_only_int_gptq__prompt.s.ref').read().split('\n')
H = [l for l in hdr if l.startswith(';') and '@launch' not in l and not l.startswith('; Override') and not l.startswith('; grid=')]
out = H + [f"; @launch grid=(224,1,1) block=(512,1,1) lds={LDS_BYTES}",
  '.amdgcn_target "amdgcn-amd-amdhsa--gfx950"', ".text", f".globl {NAME}", ".p2align 8", f".type {NAME},@function", f"{NAME}:"]
out += C.L + O.L + [".p2align 6", "L_Y:"] + Y.L + ["L_fin:"] + F.L
out += ["L_end:", "    s_endpgm", f".set CODE_BYTES, L_end - {NAME} - 128", '.section .rodata,"a"', ".p2align 6", f".amdhsa_kernel {NAME}",
  "  .amdhsa_next_free_vgpr 256", "  .amdhsa_next_free_sgpr 102", f"  .amdhsa_accum_offset {ACC_OFF}",
  "  .amdhsa_group_segment_fixed_size 0", "  .amdhsa_kernarg_size 64", "  .amdhsa_user_sgpr_count 2",
  "  .amdhsa_user_sgpr_kernarg_segment_ptr 1", "  .amdhsa_system_sgpr_workgroup_id_x 1", ".end_amdhsa_kernel"]
open(args.o, "w").write("\n".join(out) + "\n")
print(f"wrote {args.o}: C {len(C.L)} O {len(O.L)} Y {len(Y.L)} NVO={D.n} NVY={DY.n} nvA={nvA} bars={O.nbar}")
```

```python
import sys, argparse
from collections import deque
ap = argparse.ArgumentParser()
def opt(n, d, t=int): ap.add_argument('--'+n, type=t, default=d)
ap.add_argument('-o', default='k.s')
opt('stamps', 0); opt('pre', 0); opt('dbg', '', str); opt('xr', 4); opt('rot', 0); opt('pf', 1)
opt('cv', 4.5, float); opt('cm', 18.0, float)
opt('va', '1600,2100', str)
opt('xp', 0); opt('sp', '', str); opt('nys', 0); opt('pw8', 1); opt('dly', 0); opt('ys', 1); opt('orl', 290); opt('ywb', 10); opt('pfn', 16); opt('xp2', 8); opt('xp3', 1); opt('s3', 0); opt('ylead', 6); opt('ypre', 100); opt('ywp', 1)
opt('yi', '50,135,148,147,147', str)
opt('od', '0,8,8,8,8,8', str); opt('il', 1); opt('oup', 7); opt('oc', 3); opt('yu', 12); opt('wi', 0); opt('ord', 24); opt('b1v', 0)
opt('D', 7); opt('bs', 2); opt('bk', 10); opt('wg', 4); opt('capb', 12)
opt('rka', '0,2,4,6,8,10,12,14', str); opt('rkc', '0,1,2,3,4,5,6,7', str); opt('rkb', '6,7,8,9,10,11,12,13', str)
opt('sz0', 22); opt('sz1', 41); opt('stmod', '', str)
opt('order', 'S2,S3,S4,S5,S6,F0,S7,F1,F2,F3,F4,F5,F6,F7', str)
opt('pw', '3,4,6,8,9,10,11,12', str)
args = ap.parse_args()
IL = lambda s: [int(x) for x in s.split(',')]
NAME = "standalone__weight_only_int_gptq__prompt_kernel"
BLK = 1040; UNIT = 16*BLK; PAIR = 2*UNIT
SPARE0 = 8*UNIT; XS = 7680; LDS_BYTES = SPARE0 + 4*XS
XBYTES = 2048*2040; QBYTES = 102*3584*4; SBYTES = 17*3584*2; OBYTES = 2048*3584*2
ACC_OFF = 176; NOACC = 5
SLOTS = ['A'] + args.order.split(','); NSL = len(SLOTS)
PW = IL(args.pw)
XPAIR = {'S0': 3, 'S1': 1}
for n in range(1, NSL): XPAIR[SLOTS[n]] = [2, 0, 1][(n-1) % 3]
PREG = [6 + (p % 3) for p in range(8)]
for p in range(8):
    fs = SLOTS.index(f"F{p}"); assert PW[p] < fs
    ss = 0 if p < 2 else SLOTS.index(f"S{p}"); assert PW[p] > ss
    if p >= 3: assert PW[p] > SLOTS.index(f"F{p-3}")
    if p+NOACC < 8: assert PW[p] < SLOTS.index(f"S{p+NOACC}")
NY0 = SLOTS.index('F0')
DPLAN = {n: [(SLOTS[n+2], j) for j in range(8)] for n in range(1, NSL-2)}
def downer(n, j):
    if n < NY0: return 'O' if j < IL(args.od)[n-1] else 'Y'
    return 'O' if SLOTS[n][0] == 'F' else 'Y'
vA_, vB_ = 128, 129
vT = [130, 131, 132]; vMA, vMB = 133, 134; vC = 135
vF = [136, 137, 138, 139]
vM = {1:140, 4:141, 7:142, 0:143, 3:144, 6:145}
vMC, vSH1, vSH2, vS2, vZ2, vQm, vQt, vSO, vWrd, vOSZ = range(146, 156)
vR = [168, 169]; vDO, vDY, vP, vOUT, vOUT2 = 170, 171, 172, 173, 174
sX, sQ, sS, sZ, sO, sWS = 8, 12, 16, 20, 24, 28
sP1 = 32
(sK7, sM30, sW8, sCB, sRB, sROT, sSTRIP, sROLE, sL1, sXB, sOB, sTMP, sTMP2, sLQ, sLS, sXR, sCOL, sU, sHI) = range(34, 53)
sPFB = 53; sTX0 = 54; sTO0 = 62; sST = 82

class Em:
    nbar = 0; nost = False
    def __init__(s): s.L = []; s.vmq = []; s.lgq = []; s.names = []
    def A(s, t): s.L.append("    " + t)
    def vm(s, t, tag): s.A(t); s.vmq.append(tag)
    def lg(s, t, tag): s.A(t); s.lgq.append(tag)
    def wait(s, vtag=None, ltag=None, lall=False):
        parts = []
        if vtag is not None and vtag in s.vmq:
            i = len(s.vmq) - 1 - s.vmq[::-1].index(vtag); n = len(s.vmq) - 1 - i; del s.vmq[:i+1]
            parts.append(f"vmcnt({min(n,63)})")
        if lall:
            if s.lgq: parts.append("lgkmcnt(0)"); s.lgq.clear()
        elif ltag is not None and ltag in s.lgq:
            i = len(s.lgq) - 1 - s.lgq[::-1].index(ltag); n = len(s.lgq) - 1 - i; del s.lgq[:i+1]
            parts.append(f"lgkmcnt({min(n,15)})")
        if parts: s.A("s_waitcnt " + " ".join(parts))
    def stamp(s, nm):
        if args.stamps and not (s.nost and nm not in ('pad', 'end')):
            s.A("s_waitcnt lgkmcnt(0)"); s.lgq.clear()
            s.A("s_memtime s[6:7]"); s.A("s_waitcnt lgkmcnt(0)")
            s.A(f"s_mov_b32 s{sST+len(s.names)}, s6"); s.names.append(nm); assert len(s.names) <= 15
    def barrier(s, slot):
        tags = [t for t in s.vmq if t[0] == 'x' and t[1] == slot]
        s.wait(vtag=tags[-1] if tags else None, lall=True)
        s.A("s_barrier"); s.nbar += 1
    def x_pre(s, it):
        sl, j = it; tau = int(sl[1])
        if j: s.A(f"s_add_u32 s{sU}, s{sTX0+tau}, {j*2040}")
        s.A(f"s_add_u32 m0, s{sL1}, {XPAIR[sl]*PAIR + j*BLK}")
    def x_go(s, it):
        sl, j = it; tau = int(sl[1])
        s.vm(f"buffer_load_dwordx4 v{vDO if sl[0] == 'S' else vDY}, s[{sX}:{sX+3}], s{sU if j else sTX0+tau} offen lds", ('x', sl, j))
    def x_full(s, it):
        sl, j = it; tau = int(sl[1])
        s.A(f"s_add_u32 m0, s{sL1}, {XPAIR[sl]*PAIR + j*BLK}")
        s.A(f"s_add_u32 s{sU}, s{sTX0+tau}, {j*2040}")
        s.x_go(it)

C = Em(); A = C.A
GRID = 256 if args.pw8 else 224
A(f"s_cmp_ge_u32 s2, {GRID}")
A("s_cbranch_scc1 L_end")
if args.pw8:
    A("s_cmp_lt_u32 s2, 32")
    A("s_cbranch_scc1 L_PF")
    A("s_sub_u32 s2, s2, 32")
for _ in range(args.dly): A("s_sleep 32")
if args.stamps: A("s_memrealtime s[98:99]"); A("s_memtime s[100:101]"); C.names += ["rt0", "t0"]
A(f"s_load_dwordx2 s[{sQ}:{sQ+1}], s[0:1], 8")
A(f"s_load_dwordx2 s[{sS}:{sS+1}], s[0:1], 16")
A(f"s_load_dwordx2 s[{sZ}:{sZ+1}], s[0:1], 24")
A(f"s_load_dwordx2 s[{sX}:{sX+1}], s[0:1], 0")
A(f"s_load_dwordx2 s[{sO}:{sO+1}], s[0:1], 40")
if args.stamps: A(f"s_load_dwordx2 s[{sWS}:{sWS+1}], s[0:1], 56")
vL, vI, vH, vCol, vX, vY, vG = 4, 5, 6, 7, 8, 9, 10
A(f"v_lshrrev_b32 v{vX}, 6, v0")
A(f"v_and_b32 v{vL}, 63, v0")
A(f"v_readfirstlane_b32 s{sW8}, v{vX}")
XR = args.xr; XC = 28//XR
A(f"s_and_b32 s{sTMP}, s2, 7")
A(f"s_lshr_b32 s{sTMP2}, s2, 3")
if args.pf:
    A("s_getpc_b64 s[4:5]")
    A(f"s_lshl_b32 s3, s{sTMP2}, 5")
    A(f"v_and_b32 v2, 3, v0")
    A(f"v_lshl_add_u32 v1, v{vX}, 2, v2")
    A("v_add_u32 v1, s3, v1")
    A("v_and_b32 v1, 255, v1")
    A("v_lshlrev_b32 v1, 7, v1")
    A("v_min_u32 v1, CODE_BYTES, v1")
    C.vm("global_load_dword v3, v1, s[4:5]", ('pf',))
if XR == 1:
    A(f"s_mov_b32 s{sRB}, s{sTMP}"); A(f"s_mov_b32 s{sCB}, s{sTMP2}"); A(f"s_mov_b32 s{sROT}, s{sTMP2}")
else:
    lg2 = XR.bit_length()-1
    A(f"s_and_b32 s{sCB}, s{sTMP}, {XR-1}")
    A(f"s_mul_i32 s{sCB}, s{sCB}, {XC}")
    A(f"s_lshr_b32 s{sROT}, s{sTMP2}, {lg2}")
    A(f"s_add_u32 s{sCB}, s{sCB}, s{sROT}")
    A(f"s_andn2_b32 s{sRB}, s{sTMP}, {XR-1}")
    A(f"s_and_b32 s{sTMP2}, s{sTMP2}, {XR-1}")
    A(f"s_add_u32 s{sRB}, s{sRB}, s{sTMP2}")
if args.rot != 1: A(f"s_mul_i32 s{sROT}, s{sROT}, {args.rot}")
A(f"s_and_b32 s{sSTRIP}, s{sW8}, 3")
A(f"s_lshl_b32 s{sCOL}, s{sCB}, 7")
A(f"s_lshl_b32 s{sTMP2}, s{sSTRIP}, 5")
A(f"s_add_u32 s{sCOL}, s{sCOL}, s{sTMP2}")
for (s, nb) in ((sQ,QBYTES),(sS,SBYTES),(sZ,SBYTES),(sX,XBYTES)):
    A(f"s_mov_b32 s{s+2}, {nb}"); A(f"s_mov_b32 s{s+3}, 0x20000")
A(f"v_lshrrev_b32 v{vH}, 5, v{vL}")
A(f"v_lshrrev_b32 v{vG}, 4, v{vL}")
A(f"v_and_b32 v{vQt}, 7, v{vL}")
A(f"s_lshl_b32 s{sTMP2}, s{sCOL}, 2")
A(f"v_lshl_add_u32 v{vQt}, v{vQt}, 4, s{sTMP2}")
A(f"v_and_b32 v{vCol}, 3, v{vL}"); A(f"v_bfe_u32 v{vY}, v{vL}, 2, 2"); A(f"v_lshl_or_b32 v{vCol}, v{vCol}, 2, v{vY}")
if args.stamps: A(f"s_mov_b32 s{sWS+2}, 0x10000000"); A(f"s_mov_b32 s{sWS+3}, 0x20000")
PFPOS = len(C.L)
A(f"s_cmp_ge_u32 s{sW8}, 4")
A("s_cbranch_scc1 L_Y")

def emit_xsetup(E):
    A = E.A
    A(f"v_and_b32 v{vI}, 31, v{vL}")
    A(f"v_mul_u32_u24 v{vDO}, 480, v{vH}")
    A(f"v_lshlrev_b32 v12, 5, v{vH}")
    A(f"v_add_u32 v12, {1920-480}, v12")
    A(f"v_cmp_lt_u32 vcc, 29, v{vI}")
    A(f"s_mul_i32 s{sXB}, s{sRB}, {256*2040}")
    A(f"s_mul_i32 s{sTMP}, s{sSTRIP}, {8*2040}")
    A(f"v_cndmask_b32 v{vDO}, v{vDO}, v12, vcc")
    A(f"v_lshl_add_u32 v{vDO}, v{vI}, 4, v{vDO}")
    A(f"s_add_u32 s{sXB}, s{sXB}, s{sTMP}")
    A(f"s_mul_i32 s{sL1}, s{sSTRIP}, {8*BLK}")
def emit_tx(E, tau):
    A = E.A
    A(f"s_add_u32 s{sTX0+tau}, s{sROT}, {tau}"); A(f"s_and_b32 s{sTX0+tau}, s{sTX0+tau}, 7")
    A(f"s_mul_i32 s{sTX0+tau}, s{sTX0+tau}, {32*2040}"); A(f"s_add_u32 s{sTX0+tau}, s{sTX0+tau}, s{sXB}")
def emit_dy(E):
    A = E.A
    A(f"v_and_b32 v12, 15, v{vL}")
    A(f"v_mul_u32_u24 v{vDY}, 240, v{vG}")
    A(f"v_lshl_add_u32 v{vDY}, v12, 4, v{vDY}")
    A(f"v_cmp_eq_u32 vcc, 15, v12")
    A(f"v_add_u32 v{vDY}, 960, v{vDY}")
    A(f"v_lshlrev_b32 v13, 4, v{vG}")
    A(f"v_add_u32 v13, 1984, v13")
    A(f"v_min_u32 v13, 2024, v13")
    A(f"v_cndmask_b32 v{vDY}, v{vDY}, v13, vcc")
vPF = 175
def emit_pfsetup(E):
    A = E.A; RS = 8*(28//args.xr)
    A(f"v_mul_u32_u24 v12, 26, v{vL}"); A("v_lshrrev_b32 v12, 8, v12")
    A(f"v_mul_u32_u24 v13, 10, v12"); A(f"v_sub_u32 v13, v{vL}, v13")
    A("v_lshlrev_b32 v13, 7, v13"); A("v_min_u32 v13, 1076, v13")
    A(f"v_mul_u32_u24 v12, {RS*2040}, v12"); A(f"v_add_u32 v{vPF}, v12, v13")
    A(f"s_lshr_b32 s{sPFB}, s2, {3 + (args.xr.bit_length()-1)}"); A(f"s_lshl_b32 s{sPFB}, s{sPFB}, 3"); A(f"s_add_u32 s{sPFB}, s{sPFB}, s{sW8}")
    A(f"s_lshl_b32 s{sU}, s{sRB}, 8"); A(f"s_add_u32 s{sPFB}, s{sPFB}, s{sU}"); A(f"s_mul_i32 s{sPFB}, s{sPFB}, 2040")
def emit_pf(E, q0, nq, back, dst):
    RS = 8*(28//args.xr)
    E.A(f"s_add_u32 s{sU}, s{sPFB}, {q0*RS*2040 + (960 if back else 0)}")
    if not back: E.A(f"s_sub_u32 s{sU}, s{sU}, 120"); E.A(f"s_max_i32 s{sU}, s{sU}, 0")
    m = (1 << (10*nq)) - 1
    E.A(f"s_mov_b32 exec_lo, {hex(m & 0xffffffff)}"); E.A(f"s_mov_b32 exec_hi, {hex(m >> 32)}")
    E.vm(f"buffer_load_dword v{dst}, v{vPF}, s[{sX}:{sX+3}], s{sU} offen", ('xpf',))
    E.A("s_mov_b64 exec, -1")
def emit_spsetup(E):
    A = E.A
    A(f"s_lshr_b32 s{sPFB}, s2, {3 + (args.xr.bit_length()-1)}"); A(f"s_lshl_b32 s{sPFB}, s{sPFB}, 2"); A(f"s_add_u32 s{sPFB}, s{sPFB}, s{sSTRIP}")
    A(f"s_lshl_b32 s{sU}, s{sRB}, 8"); A(f"s_add_u32 s{sPFB}, s{sPFB}, s{sU}"); A(f"s_mul_i32 s{sPFB}, s{sPFB}, 2040")
def emit_sp(E, q, back):
    RS = 4*(28//args.xr)
    E.A(f"s_add_u32 s{sU}, s{sPFB}, {q*RS*2040 + (960 if back else 0)}")
    if not back: E.A(f"s_sub_u32 s{sU}, s{sU}, 120"); E.A(f"s_max_i32 s{sU}, s{sU}, 0")
    for i in range(10):
        E.A(f"s_buffer_load_dword s{70 + i}, s[{sX}:{sX+3}], s{sU} offset:{min(128*i, 1076)}")
SP = {}
for it in args.sp.split(','):
    if it:
        pos, q0, nq, back = it.split(':'); SP.setdefault(pos, []).extend([(q, int(back)) for q in range(int(q0), int(q0)+int(nq))])
def do_sp(E, pos):
    for q, back in SP.get(pos, []): emit_sp(E, q, back)
def emit_consts(E):
    A = E.A
    A(f"v_mov_b32 v{vMA}, 0x0007000e"); A(f"v_mov_b32 v{vMB}, 0x00380070"); A(f"v_mov_b32 v{vMC}, 0x01c00380")
    A(f"s_mov_b32 s{sK7}, {hex((127+17) << 23)}"); A(f"s_mov_b32 s{sM30}, 0x3fffffff")

if args.xp:
    tail = C.L[PFPOS:]; del C.L[PFPOS:]; emit_pfsetup(C); C.L.extend(tail)
NQ = -(-256 // (8*(28//args.xr)))
def mix(dst, src, hi, pos):
    return f"v_fma_mix_f32 v{dst}, v{src}, v{vM[pos]}, -v{vC} op_sel:[{hi},0,0] op_sel_hi:[1,0,0]"
TR2 = [[vT[0], vT[1], vA_, vT[2], vB_], [156, 157, 158, 159, 160]]
vU = [161, 162]
FL = [(0,0,1),(1,0,4),(2,0,7),(3,0,1),(4,0,4),(0,1,0),(1,1,3),(2,1,6),(3,1,0),(4,1,3)]
class Deq:
    def __init__(s, E): s.E = E; s.V = deque(); s.pos = 0; s.produced = {}; s.issued = set(); s.rawq = deque(); s.par = 0; s.slots = None
    def vop(s, text, needs=(), prod=None): s.V.append((text, tuple(needs), prod))
    def dword(s, p, nd, d0, ne):
        s.par ^= 1
        TRs = TR2[s.par]; a_, b_ = TRs[2], TRs[4]
        ext = [(f"v_add_u32 v{a_}, v{p}, v{p}", tuple(nd), None), (f"v_lshrrev_b32 v{b_}, 8, v{p}", tuple(nd), None),
               (f"v_and_b32 v{TRs[0]}, v{vMA}, v{a_}", (), None), (f"v_and_b32 v{TRs[1]}, v{vMB}, v{a_}", (), None),
               (f"v_and_b32 v{a_}, v{vMC}, v{a_}", (), None), (f"v_and_b32 v{TRs[3]}, v{vMA}, v{b_}", (), None),
               (f"v_and_b32 v{b_}, v{vMB}, v{b_}", (), None)]
        body = []
        def cvt(e): body.append((f"v_cvt_pk_bf16_f32 v{d0+e}, v{vF[(2*e)%4]}, v{vF[(2*e+1)%4]}", (), d0+e))
        for e in range(ne):
            for k in (2*e, 2*e+1):
                ti, hi, pos = FL[k]; body.append((mix(vF[k%4], TRs[ti], hi, pos), (), None))
            if e > 0: cvt(e-1)
        cvt(ne-1)
        if args.il and s.slots is not None and nd:
            start, n = s.slots
            V = list(s.V); prev = V[start:start+n]; rest = V[start+n:]; merged = []
            for i, op in enumerate(prev):
                merged.append(op)
                if i % 2 == 1 and ext: merged.append(ext.pop(0))
            s.V = deque(V[:start] + merged + ext + rest)
        else: s.V.extend(ext)
        s.slots = (len(s.V), len(body)); s.V.extend(body)
    def consts(s, rs, rz, nd):
        s.vop(f"v_mul_f32 v{vM[7]}, s{sK7}, v{rs}", nd); s.vop(f"v_mul_f32 v{vC}, v{rz}, v{rs}", nd)
        for (pa, pb, k) in ((6,7,'2.0'),(4,6,'4.0'),(3,4,'2.0'),(1,3,'4.0'),(0,1,'2.0')): s.vop(f"v_mul_f32 v{vM[pa]}, {k}, v{vM[pb]}")
    def finalize(s, rawreg):
        s.last = {}; s.first = {}; s.wpos = {}
        for i, (_, nd, prod) in enumerate(s.V):
            for it in nd: s.last[it] = i; s.first.setdefault(it, i)
            if prod is not None: s.wpos.setdefault(prod, i)
        for it, regs in rawreg.items():
            for r in regs:
                if r in s.wpos: assert s.wpos[r] > s.last[it], (it, r)
        s.n = len(s.V)
    def emit(s):
        while s.rawq and s.rawq[0][0] <= s.pos: s.rawq.popleft()[1]()
        text, nd, prod = s.V.popleft()
        for it in nd:
            assert it in s.issued, it
            s.E.wait(ltag=it, vtag=it)
        s.E.A(text); s.pos += 1
        if prod is not None: s.produced[prod] = len(s.E.L)-1
def w_dma(E, i, so, mask48=False):
    E.A(f"s_add_u32 m0, s{sXR}, {i*1024}"); E.A(f"s_mov_b32 s{sLQ}, {so}")
    if mask48: E.A("s_mov_b32 exec_hi, 0xffff")
    E.vm(f"buffer_load_dwordx4 v{vQt if i == 6 else vQm}, s[{sQ}:{sQ+3}], s{sLQ} offen lds", ('w', i))
    if mask48: E.A("s_mov_b32 exec_hi, -1")

O = Em(); O.vmq = list(C.vmq); O.names = list(C.names); A = O.A
A("s_setprio 2")
A(f"s_mul_i32 s{sXR}, s{sSTRIP}, {XS}"); A(f"s_add_u32 s{sXR}, s{sXR}, {SPARE0}")
A(f"v_bfe_u32 v11, v{vL}, 3, 1")
A(f"v_mad_u32_u24 v{vY}, v11, 24, v{vG}")
A(f"v_mul_u32_u24 v{vQm}, 14336, v{vY}")
A(f"v_add_u32 v{vQm}, v{vQm}, v{vQt}")
A(f"v_bfe_u32 v{vY}, v{vL}, 4, 1")
A(f"v_lshl_or_b32 v{vCol}, v{vCol}, 1, v{vY}")
A(f"v_add_u32 v{vY}, s{sCOL}, v{vCol}")
A(f"v_mul_u32_u24 v{vSO}, {4*7168}, v{vH}")
A(f"v_lshl_add_u32 v{vSO}, v{vY}, 1, v{vSO}")
raw = []
for g in range(5): raw += [('S',g),('Z',g)] + [('q',6*g+k) for k in range(6 if g < 4 else 4)]
rr = {it: 90+i for i, it in enumerate(raw)}
for g in range(2): A(f"v_mov_b32 v{rr[('S',g)]}, 0"); A(f"v_mov_b32 v{rr[('Z',g)]}, 0")
A(f"s_movk_i32 s{sLS}, 7168")
D = Deq(O)
def pt(pj): return ('p', pj >> 1)
for g in range(5):
    D.consts(rr[('S',g)], rr[('Z',g)], [('S',g),('Z',g)])
    if g < 4:
        for pj in range(6*g, 6*g+6): D.dword(rr[('q',pj)], [pt(pj)], 5*pj, 5)
    else:
        e0, e1, e2, e3 = [rr[('q',24+k)] for k in range(4)]; nd = [pt(24), pt(26)]
        D.vop(f"v_and_b32 v{vS2}, s{sM30}, v{e0}", nd); D.vop(f"v_and_b32 v{vZ2}, s{sM30}, v{e1}", nd)
        D.vop(f"v_lshrrev_b32 v{vS2}, v{vSH1}, v{vS2}"); D.vop(f"v_lshrrev_b32 v{vZ2}, v{vSH1}, v{vZ2}")
        D.vop(f"v_lshl_or_b32 v{vS2}, v{e1}, v{vSH2}, v{vS2}", nd); D.vop(f"v_lshl_or_b32 v{vZ2}, v{e2}, v{vSH2}, v{vZ2}", nd)
        D.dword(vS2, [], 120, 5); D.dword(vZ2, [], 125, 3)
rawregs = {('p', k): [rr[('q',2*k)], rr[('q',2*k+1)]] for k in range(14)}
for g in range(5): rawregs[('S',g)] = [rr[('S',g)]]; rawregs[('Z',g)] = [rr[('Z',g)]]
D.finalize(rawregs)
def o_sz(g):
    if g < 2:
        so = f"s{sLS}" if g else "0"
        O.vm(f"buffer_load_short_d16_hi v{rr[('S',g)]}, v{vSO}, s[{sS}:{sS+3}], {so} offen", ('S',g))
        O.vm(f"buffer_load_short_d16_hi v{rr[('Z',g)]}, v{vSO}, s[{sZ}:{sZ+3}], {so} offen", ('Z',g))
    else:
        O.wait(vtag=('osz',))
        O.lg(f"ds_read_u16_d16_hi v{rr[('S',g)]}, v{vSO} offset:{6912 + (g-2)*64}", ('S',g))
        O.lg(f"ds_read_u16_d16_hi v{rr[('Z',g)]}, v{vSO} offset:{7296 + (g-2)*64}", ('Z',g))
    D.issued.update([('S',g),('Z',g)])
def o_w(i): w_dma(O, i, (4*i if i < 6 else 96)*14336, i == 6)
def o_rd(k):
    i = k >> 1; r = rr[('q',2*k)]; O.wait(vtag=('w', i))
    o0 = 4*i + 2*(k & 1)
    O.lg(f"ds_read2st64_b32 v[{r}:{r+1}], v{vWrd} offset0:{o0} offset1:{o0+1}", ('p', k)); D.issued.add(('p', k))
def o_osz():
    O.A(f"s_add_u32 m0, s{sXR}, 6912"); O.A("s_mov_b64 exec, 0xffffff")
    O.vm(f"buffer_load_dwordx4 v{vOSZ}, s[{sS}:{sS+3}], 0 offen lds", ('osz0',))
    O.A(f"s_add_u32 m0, s{sXR}, 7296"); O.A("s_nop 0")
    O.vm(f"buffer_load_dwordx4 v{vOSZ}, s[{sZ}:{sZ+3}], 0 offen lds", ('osz',))
    O.A("s_mov_b64 exec, -1")
A("s_waitcnt lgkmcnt(0)")
if args.stamps: A(f"s_mov_b32 s{sST}, s98"); A(f"s_mov_b32 s{sST+1}, s100")
if args.pre == 2: O.stamp("karg")
o_w(0); o_sz(0)
if args.xp: emit_pf(O, 0, args.xp, False, 166)
o_w(1); o_sz(1)
A(f"v_add_u32 v12, v11, v{vG}")
A(f"v_mul_u32_u24 v12, 14336, v12")
A(f"v_add_u32 v{vQt}, v{vQt}, v12")
o_w(2)
GC = sum(g << (5*i) for i, g in enumerate([2,3,16,6,7,16]))
A(f"v_lshrrev_b32 v12, 2, v{vL}"); A(f"v_min_u32 v12, 5, v12"); A(f"v_mul_u32_u24 v12, 5, v12")
A(f"s_mov_b32 s{sTMP}, {GC}"); A(f"v_lshrrev_b32 v12, v12, s{sTMP}"); A(f"v_and_b32 v12, 31, v12")
if args.oup > 3: o_w(3)
A(f"v_mul_u32_u24 v12, 7168, v12")
A(f"v_and_b32 v13, 3, v{vL}")
A(f"s_lshl_b32 s{sTMP2}, s{sCOL}, 1")
A(f"v_lshl_add_u32 v13, v13, 4, s{sTMP2}")
A(f"v_add_u32 v{vOSZ}, v12, v13")
o_osz()
A(f"v_lshlrev_b32 v{vWrd}, 2, v{vCol}")
A(f"v_lshl_add_u32 v{vWrd}, v{vH}, 7, v{vWrd}")
A(f"v_add_u32 v{vWrd}, s{sXR}, v{vWrd}")
emit_consts(O)
if args.oup > 4: o_w(4)
for g in range(2,5): A(f"v_mov_b32 v{rr[('S',g)]}, 0"); A(f"v_mov_b32 v{rr[('Z',g)]}, 0")
A(f"v_mul_u32_u24 v{vSH1}, 18, v{vH}")
A(f"v_sub_u32 v{vSH2}, 30, v{vSH1}")
if args.oup > 5: o_w(5)
A(f"v_mul_u32_u24 v{vSO}, 192, v{vH}")
A(f"v_lshl_add_u32 v{vSO}, v{vCol}, 1, v{vSO}")
A(f"v_add_u32 v{vSO}, s{sXR}, v{vSO}")
if args.oup > 6: o_w(6)
emit_xsetup(O)
emit_dy(O)
A(f"v_mul_u32_u24 v{vR[0]}, {BLK}, v{vI}")
A(f"v_lshl_add_u32 v{vR[0]}, v{vH}, 9, v{vR[0]}")
A(f"v_add_u32 v{vR[1]}, {2*PAIR}, v{vR[0]}")
A(f"v_and_b32 v12, 15, v{vL}")
A(f"v_bfe_u32 v13, v{vL}, 4, 1")
A(f"s_lshl_b32 s{sTMP2}, s{sSTRIP}, 12"); A(f"s_add_u32 s{sTMP2}, s{sTMP2}, {6*UNIT}")
A(f"v_lshl_add_u32 v{vP}, v12, 4, s{sTMP2}")
A(f"v_lshl_add_u32 v{vP}, v13, 10, v{vP}")
A(f"v_lshl_add_u32 v{vP}, v{vH}, 8, v{vP}")
otx = deque(range(8))
cap_ = lambda x, i: min(x, args.orl + 4*i) if args.ys else x
sched = [(cap_(max(0, D.first[('p', k)] - args.ord), k), (lambda k=k: o_rd(k))) for k in range(14)]
sched += [(cap_(D.first[('S', g)] - args.ord, 12+g), (lambda g=g: o_sz(g))) for g in (2,3,4)]
sched += [(8 + 10*(i-args.oup), (lambda i=i: o_w(i))) for i in range(args.oup, 7)]
D.rawq = deque(sorted(sched, key=lambda t: t[0]))
O.stamp("issued")
VA = IL(args.va)
prodat = {t: max(D.wpos[4*t+k] for k in range(4)) + 3 for t in range(32)}
ev = []; time = 0.0; vi = 0; nk = [0,0]; barT = {}; lastM = -99; Q = []
while vi < D.n or any(k < 32 for k in nk):
    j = len(barT)
    if j < 2 and (time >= VA[j] or (vi >= D.n and (j == 0 or nk[0] >= 28))): barT[j] = time; ev.append(('B', j)); time += 20; continue
    cand = [j for j in range(2) if j in barT and time >= barT[j] + 110 and nk[j] < 32 and prodat[nk[j]] <= vi + (99 if vi >= D.n else 0)]
    if cand and (time - lastM >= 30 or vi >= D.n):
        j = cand[0]; time = max(time, lastM + 32); ev.append(('M',)); Q.append((j, nk[j])); nk[j] += 1; lastM = time; time += args.cm
    elif vi < D.n: ev.append(('V',)); vi += 1; time += args.cv
    else: time += 4
print(f"phase A model: {time:.0f} cycles")
for n in range(1, NSL):
    if SLOTS[n][0] == 'S': Q += [(int(SLOTS[n][1]), t) for t in range(32)]
open_t = set(); rp = [0]; mp = [0]; lastm = {}
def oacc(tau):
    i = tau % NOACC
    return ('a', 32 + 16*i) if i < 3 else ('v', 128 + 16*(i-3))
def o_read(mx=1):
    n = 0
    while n < mx and rp[0] < len(Q) and rp[0] - mp[0] < args.D + 1 and Q[rp[0]][0] in open_t:
        tau, t = Q[rp[0]]; p = XPAIR[f"S{tau}"]; f = 4*(rp[0] % 8)
        O.lg(f"ds_read_b128 a[{f}:{f+3}], v{vR[p >> 1]} offset:{(p & 1)*PAIR + 16*t}", ('f', rp[0])); rp[0] += 1; n += 1
def o_mfma():
    i = mp[0]; tau, t = Q[i]; assert i < rp[0], "frag not read"
    if ('f', i) in O.lgq: O.wait(ltag=('f', min(i+1, rp[0]-1)) if rp[0] - i > 5 else ('f', i))
    dist = len(O.L) - 1 - max(D.produced[4*t+k] for k in range(4))
    if dist < 2: O.A(f"s_nop {1-dist}")
    fl, a = oacc(tau); f = 4*(i % 8)
    c = "0" if t == 0 else f"{fl}[{a}:{a+15}]"
    O.A(f"v_mfma_f32_32x32x16_bf16 {fl}[{a}:{a+15}], a[{f}:{f+3}], v[{4*t}:{4*t+3}], {c}")
    mp[0] += 1; lastm[tau] = len(O.L)-1
def pwrites(p):
    fl, a0 = oacc(p)
    return [f"ds_write_b128 v{vP}, {fl}[{a0+4*a}:{a0+4*a+3}] offset:{(PREG[p]-6)*UNIT + (a>>1)*2048 + (a&1)*512}" for a in range(4)]
first = True; cur = [0]; fillq = deque(); pend = [None]; after_last = [None]; run_slot = [0]
def o_need_tx(tau):
    if tau in otx: otx.remove(tau); emit_tx(O, tau)
def o_load_interval(n):
    ws = [('w', w, p) for p in range(8) if PW[p] == n for w in pwrites(p)]
    xs = [('x', it) for it in DPLAN.get(n, []) if downer(n, it[1]) == 'O']
    while ws or xs:
        for _ in range(args.wi if args.wi else 99):
            if ws: fillq.append(ws.pop(0))
        if xs: fillq.append(xs.pop(0))
def o_fill(now=False):
    it = fillq[0]
    if it[0] == 'w':
        done = sum(1 for q in Q[:mp[0]] if q[0] == it[2]) == 32
        if not now and (not done or len(O.L) < lastm[it[2]] + 13): return
        assert done
        if len(O.L) < lastm[it[2]] + 13: O.A(f"s_nop {lastm[it[2]] + 13 - len(O.L) - 1}")
        fillq.popleft(); O.lg(it[1], ('pw',))
    else:
        fillq.popleft(); o_need_tx(int(it[1][0][1]))
        if now: O.x_full(it[1])
        else: O.x_pre(it[1]); pend[0] = it[1]
def o_flush():
    if pend[0]: O.x_go(pend[0]); pend[0] = None
    while fillq: o_fill(True)
def o_bar(n):
    o_flush(); O.barrier(SLOTS[n]); cur[0] = n; o_load_interval(n)
    if args.xp and n == args.xp3: emit_pf(O, 0, NQ, True, 166)
    if SLOTS[n][0] == 'S': open_t.add(int(SLOTS[n][1]))
def o_after_mfma(endidx):
    if pend[0]: O.x_go(pend[0]); pend[0] = None
    if rp[0] >= endidx and cur[0] == run_slot[0] and (len(D.V) <= args.b1v or mp[0] >= endidx - 3):
        if after_last[0] is None: after_last[0] = mp[0]
        if mp[0] > after_last[0] or not O.lgq:
            after_last[0] = None; o_bar(cur[0]+1)
            if SLOTS[cur[0]][0] != 'S': O.A("s_setprio 3")
    o_read(2)
    if fillq and cur[0] >= 1 and SLOTS[cur[0]][0] == 'S' and (fillq[0][0] == 'w' or mp[0] % args.oc == 0): o_fill()
for e in ev:
    if e[0] == 'V':
        D.emit()
        if first: O.stamp("firstW"); first = False
        if D.pos % 2 == 0: o_read(1)
    elif e[0] == 'B':
        if args.ys and e[1] == 1:
            while D.rawq: D.rawq.popleft()[1]()
        if args.pre: O.stamp(f"pa{e[1]}")
        O.barrier(f"S{e[1]}"); open_t.add(e[1])
        if args.xp and e[1] == 0 and args.xp < NQ: emit_pf(O, args.xp, NQ-args.xp, False, 166)
        if not args.pre: O.stamp(f"a{e[1]}")
        o_read(2)
    else: o_mfma(); o_after_mfma(64)
assert not D.V and not D.rawq and cur[0] == 1
O.stamp("A"); OA_END = len(O.L)
for n in range(1, NSL):
    if SLOTS[n][0] == 'S':
        run_slot[0] = n; end = mp[0] + 32
        if SLOTS[n-1][0] == 'F': O.A("s_setprio 2"); o_read(8)
        while mp[0] < end: o_mfma(); o_after_mfma(end)
        assert cur[0] == n+1
    else:
        if SLOTS[n-1][0] != 'F': O.A("s_setprio 0")
        if n+1 < NSL: o_bar(n+1)
        else: o_flush()
    if n in (1,2,3,4,5,7): O.stamp(f"s{n}")
O.A("s_branch L_fin")

Y = Em(); Y.nost = bool(args.nys); Y.vmq = list(C.vmq); Y.names = list(C.names); A = Y.A
if args.xp:
    A("s_waitcnt lgkmcnt(0)"); emit_pf(Y, 0, args.xp, False, 166)
if SP:
    emit_spsetup(Y); A("s_waitcnt lgkmcnt(0)"); do_sp(Y, 's')
emit_xsetup(Y); emit_tx(Y, 0)
S0 = len(Y.L)
emit_tx(Y, 1)
assert XPAIR['S3'] == 0
if args.ys: A(f"s_mul_i32 s{sXR}, s{sSTRIP}, {XS}"); A(f"s_add_u32 s{sXR}, s{sXR}, {SPARE0}")
else: A(f"s_mov_b32 s{sXR}, s{sL1}")
A(f"v_bfe_u32 v11, v{vL}, 3, 2")
A(f"v_mad_u32_u24 v{vY}, v11, 12, v{vH}")
A(f"v_mul_u32_u24 v{vQm}, 14336, v{vY}")
A(f"v_add_u32 v{vQm}, v{vQm}, v{vQt}")
A(f"v_add_u32 v12, 1, v11"); A(f"v_lshrrev_b32 v12, 1, v12"); A(f"v_add_u32 v12, v12, v{vH}")
A(f"v_mul_u32_u24 v12, 14336, v12")
A(f"v_add_u32 v{vQt}, v{vQt}, v12")
A(f"s_lshl_b32 s{sTMP2}, s{sCOL}, 1")
A(f"v_lshl_add_u32 v{vOSZ}, v{vCol}, 2, s{sTMP2}")
A(f"v_mul_u32_u24 v{vSO}, {2*7168}, v{vG}")
A(f"v_add_u32 v{vSO}, v{vSO}, v{vOSZ}")
A(f"v_lshlrev_b32 v{vWrd}, 3, v{vCol}")
A(f"v_lshl_add_u32 v{vWrd}, v{vG}, 7, v{vWrd}")
A(f"v_add_u32 v{vWrd}, s{sXR}, v{vWrd}")
emit_consts(Y)
A(f"s_mov_b32 s{sHI}, 0xffff0000"); A(f"s_mov_b32 s{sP1}, 0"); A(f"s_mov_b32 s{sP1+1}, 0xffff0000")
A(f"v_lshlrev_b32 v12, 3, v{vG}"); A(f"s_mov_b32 s{sTMP}, 0x12180006"); A(f"v_lshrrev_b32 v{vSH1}, v12, s{sTMP}"); A(f"v_and_b32 v{vSH1}, 0xff, v{vSH1}")
A(f"v_sub_u32 v{vSH2}, 30, v{vSH1}")
emit_dy(Y)
A(f"v_and_b32 v12, 15, v{vL}")
A(f"v_mul_u32_u24 v{vR[0]}, {BLK}, v12")
A(f"v_lshl_add_u32 v{vR[0]}, v{vG}, 8, v{vR[0]}")
A(f"v_add_u32 v{vR[1]}, {2*PAIR}, v{vR[0]}")
A(f"s_lshl_b32 s{sTMP}, s{sSTRIP}, 12"); A(f"s_add_u32 s{sTMP}, s{sTMP}, {6*UNIT}")
A(f"v_lshl_add_u32 v{vP}, v{vL}, 4, s{sTMP}")
A(f"v_lshrrev_b32 v12, 2, v{vL}")
A(f"v_mul_u32_u24 v{vOUT}, 7168, v12")
A(f"v_and_b32 v12, 3, v{vL}")
A(f"v_lshl_add_u32 v{vOUT}, v12, 4, v{vOUT}")
A(f"v_add_u32 v{vOUT}, s{sTMP2}, v{vOUT}")
A(f"v_add_u32 v{vOUT2}, {16*7168}, v{vOUT}")
A(f"s_mov_b32 s{sO+2}, {OBYTES}"); A(f"s_mov_b32 s{sO+3}, 0x20000")
A(f"s_mul_i32 s{sOB}, s{sRB}, {256*7168}")
for tau in range(2, 8): emit_tx(Y, tau)
for tau in range(8):
    A(f"s_add_u32 s{sTO0+tau}, s{sROT}, {tau}"); A(f"s_and_b32 s{sTO0+tau}, s{sTO0+tau}, 7")
    A(f"s_mul_i32 s{sTO0+tau}, s{sTO0+tau}, {32*7168}"); A(f"s_add_u32 s{sTO0+tau}, s{sTO0+tau}, s{sOB}")
code = Y.L[S0:]; del Y.L[S0:]
DY = Deq(Y)
yq = {}
for j in range(6): yq[j] = 32 + 2*j
for j in range(6, 12): yq[j] = 112 + 2*(j-6)
yq[12] = 124; yq[13] = 126
ysz = {0: (30, 31), 1: (110, 111), 2: (vS2, vZ2)}
def y_consts(g, c):
    rs, rz = ysz[g]; nd = [('S',g),('Z',g)]
    if c == 0:
        DY.vop(f"v_lshlrev_b32 v{vU[0]}, 16, v{rs}", nd); DY.vop(f"v_lshlrev_b32 v{vU[1]}, 16, v{rz}", nd)
    else:
        DY.vop(f"v_and_b32 v{vU[0]}, s{sHI}, v{rs}", nd); DY.vop(f"v_and_b32 v{vU[1]}, s{sHI}, v{rz}", nd)
    DY.consts(vU[0], vU[1], [])
for g in range(2):
    for c in range(2):
        y_consts(g, c)
        for j in range(6*g, 6*g+6): DY.dword(yq[j]+c, [('p', j)], 64*c + 5*j, 5)
for c in range(2):
    y_consts(2, c); nd = [('p',12),('p',13)]
    e0, e1 = yq[12]+c, yq[13]+c
    DY.vop(f"v_and_b32 v{vU[0]}, s{sM30}, v{e0}", nd); DY.vop(f"v_lshrrev_b32 v{vU[0]}, v{vSH1}, v{vU[0]}")
    DY.vop(f"v_lshl_or_b32 v{vU[0]}, v{e1}, v{vSH2}, v{vU[0]}", nd)
    DY.dword(vU[0], [], 64*c + 60, 4)
DY.vop("\n    ".join([f"s_mov_b64 exec, s[{sP1}:{sP1+1}]"] + [x for b in (60, 124) for x in (f"v_mov_b32 v{b+2}, v{b}", f"v_mov_b32 v{b+3}, v{b+1}", f"v_mov_b32 v{b}, 0", f"v_mov_b32 v{b+1}, 0")] + ["s_mov_b64 exec, -1", "s_nop 1"]))
rawregs = {('p', j): [yq[j], yq[j]+1] for j in range(14)}
for g in range(3): rawregs[('S',g)] = [ysz[g][0]]; rawregs[('Z',g)] = [ysz[g][1]]
for j in range(6, 12): rawregs[('p', j)] = [yq[j]+1]
DY.finalize(rawregs)
def y_sz(g):
    Y.A(f"s_mov_b32 s{sLS}, {(8+g if g < 2 else 16)*7168}"); vo = vSO if g < 2 else vOSZ
    Y.vm(f"buffer_load_dword v{ysz[g][0]}, v{vo}, s[{sS}:{sS+3}], s{sLS} offen", ('S',g))
    Y.vm(f"buffer_load_dword v{ysz[g][1]}, v{vo}, s[{sZ}:{sZ+3}], s{sLS} offen", ('Z',g))
    DY.issued.update([('S',g),('Z',g)])
def y_w(i): w_dma(Y, i, (48+2*i if i < 6 else 99)*14336)
def y_rd(j):
    i = j >> 1; Y.wait(vtag=('w', i))
    Y.lg(f"ds_read_b64 v[{yq[j]}:{yq[j]+1}], v{vWrd} offset:{i*1024 + (j&1)*512}", ('p', j)); DY.issued.add(('p', j))
YI = IL(args.yi); assert len(YI) == NY0-1
nvA = DY.n - sum(YI); assert nvA >= 0
X = lambda sl, j: (lambda: Y.x_full((sl, j)))
G = [[X(f"S{t}", j) for j in range(8)] for t in range(4)]
yW = [(lambda i=i: y_w(i)) for i in range(7)] + [(lambda g=g: y_sz(g)) for g in range(3)]
seq = []; ends = []
if args.ywp < 0: seq += yW; assert args.ypre >= 25
for t in range(4 if args.ys else 3):
    seq += G[t]; ends.append(len(seq))
    if t == args.ywp and not args.ys: seq += yW
pre_n = int(len(code)*args.ypre/100); Y.L.extend(code[:pre_n]); code = code[pre_n:]
if not SP: A("s_waitcnt lgkmcnt(0)")
if args.stamps: A(f"s_mov_b32 s{sST}, s98"); A(f"s_mov_b32 s{sST+1}, s100")
if args.pre == 2: Y.stamp("karg")
step = -(-len(code)//8); nb = 0
for i, f in enumerate(seq):
    f()
    if i < 8: Y.L.extend(code[i*step:(i+1)*step])
    if i == ends[0]-1: Y.stamp("issued")
    if args.pre == 2 and i in (1, 4): Y.stamp(f"d{i}")
    while nb < 2 and i+1 >= min(ends[nb] + args.ylead, len(seq)):
        if args.pre:
            Y.wait(vtag=('x', f"S{nb}", 7)); Y.stamp(f"pa{nb}")
        Y.barrier(f"S{nb}")
        if not args.pre: Y.stamp(f"a{nb}")
        if args.xp and nb == 0 and args.xp < NQ: emit_pf(Y, args.xp, NQ-args.xp, False, 166)
        do_sp(Y, f"a{nb}")
        nb += 1
def y_s3():
    for j in range(14): y_rd(j)
    Y.wait(lall=True)
    for f in G[3]:
        f()
        for _ in range(nvA//8): DY.emit()
    while DY.pos < nvA: DY.emit()
if args.ys:
    assert nvA == 0
    yW = [yW[i] for i in (0,7,1,2,3,8,4,5,6,9)]
    for f in yW[:args.ywb]: f()
    Y.stamp("preb1")
    Y.barrier(SLOTS[1])
    for f in yW[args.ywb:]: f()
    DY.rawq = deque([(max(0, min(DY.first[('p', j)] - 20, 100 + 6*j)), (lambda j=j: y_rd(j))) for j in range(14)])
else:
    if not args.s3: y_s3()
    Y.stamp("preb1")
    Y.barrier(SLOTS[1])
    if args.s3: y_s3()
for n in range(1, NY0):
    if args.xp and n == args.xp3: emit_pf(Y, 0, NQ, True, 166)
    do_sp(Y, str(n))
    mine = [it for it in DPLAN[n] if downer(n, it[1]) == 'Y']
    tgt = DY.pos + YI[n-1]
    for it in mine:
        for _ in range(args.yu if (n > 1 or not args.ys) else 0):
            if DY.pos < tgt: DY.emit()
        Y.x_full(it)
    while DY.pos < tgt: DY.emit()
    if args.pre != 2 or n in (1, 5): Y.stamp(f"i{n}")
    Y.barrier(SLOTS[n+1])
assert not DY.V
if SP: Y.A('s_waitcnt lgkmcnt(0)')
YF0 = len(Y.L)
RKA, RKB, RKC = IL(args.rka), IL(args.rkb), IL(args.rkc)
fsets = [(n, mt, hb) for n in range(NSL) if SLOTS[n][0] == 'F' for mt in range(2) for hb in range(2)]
E = deque(); iss = {}; uid = [0]; acc_free = [0,1,2]; accof = {}; CI = []; fdone = set(); STQ = []; epn = [0]
def acc8(s): return 128 + 8*s
def e_add(kind, text, minpos=0, dep=None, done=None):
    uid[0] += 1; E.append((kind, text, uid[0], minpos, dep, done)); return uid[0]
def e_min(e):
    m = e[3]
    for d in (e[4] or []): m = max(m, iss[d] + 3)
    return m
def emit_st(): Y.vm(STQ.pop(0)[1], ('st',))
def emit_e():
    e = E.popleft(); m = e_min(e)
    if e[0] == 'q': STQ.append(e[1]); return
    if e[0] == 'chk':
        if any(p == e[1] for p, _ in STQ):
            while any(p == e[1] for p, _ in STQ): emit_st()
            Y.A("s_nop 0")
        return
    if len(Y.L) < m: Y.A(f"s_nop {m - len(Y.L) - 1}")
    Y.A(e[1]); iss[e[2]] = len(Y.L)-1
    if e[5]: e[5]()
STM = args.stmod.replace('+',' ')
def push_ep(slot, tau, mt, pos):
    a = acc8(slot); P = 152 + 4*(epn[0] % 3); epn[0] += 1; T0, T1 = 164, 165
    e_add('chk', P)
    cv = {}
    t0 = e_add('v', f"v_cvt_pk_bf16_f32 v{T0}, v{a}, v{a+4}", pos+9); t1 = e_add('v', f"v_cvt_pk_bf16_f32 v{T1}, v{a+1}, v{a+5}")
    for r in (2, 3, 0, 1): cv[r] = e_add('v', f"v_cvt_pk_bf16_f32 v{P+r}, v{a+r}, v{a+4+r}", done=(lambda: acc_free.append(slot)) if r == 1 else None)
    d = lambda dst, src, op, m: f"v_mov_b32_dpp v{dst}, v{src} {op} row_mask:0xf bank_mask:{m}"
    a0 = e_add('v', d(P+0, P+2, 'row_ror:8', '0xc'), dep=[cv[2], cv[0]])
    a1 = e_add('v', d(P+1, P+3, 'row_ror:8', '0xc'), dep=[cv[3], cv[1]])
    a2 = e_add('v', d(P+2, T0, 'row_ror:8', '0x3'), dep=[t0])
    a3 = e_add('v', d(P+3, T1, 'row_ror:8', '0x3'), dep=[t1])
    u0 = e_add('v', f"v_mov_b32 v{T0}, v{P+0}"); u1 = e_add('v', f"v_mov_b32 v{T1}, v{P+2}")
    e_add('v', d(P+0, P+1, 'row_shr:4', '0xa'), dep=[a1, a0])
    e_add('v', d(P+2, P+3, 'row_shr:4', '0xa'), dep=[a3, a2])
    e_add('v', d(P+1, T0, 'row_shl:4', '0x5'), dep=[u0])
    e_add('v', d(P+3, T1, 'row_shl:4', '0x5'), dep=[u1])
    e_add('q', (P, f"buffer_store_dwordx4 v[{P}:{P+3}], v{vOUT if mt == 0 else vOUT2}, s[{sO}:{sO+3}], s{sTO0+tau} offen {STM}"))
def yfrag(si, tp): return 32*(si % 2) + 4*tp
def y_read(si, tp):
    n, mt, hb = fsets[si]; p = XPAIR[SLOTS[n]]; f = yfrag(si, tp); fdone.add((si, tp))
    Y.lg(f"ds_read_b128 a[{f}:{f+3}], v{vR[p >> 1]} offset:{(p & 1)*PAIR + mt*UNIT + 16*(8*hb+tp)}", ('g', si, tp))
def y_ci(n, mt):
    while not acc_free: emit_e()
    s = acc_free.pop(0); accof[(n, mt)] = s; tau = int(SLOTS[n][1])
    for c in range(2): CI.append((f"ds_read_b128 v[{acc8(s)+4*c}:{acc8(s)+4*c+3}], v{vP} offset:{(PREG[tau]-6)*UNIT + mt*2048 + c*1024}", ('ci', n, mt, c)))
def nbytes(line):
    t = line.strip()
    return 4 if (t.startswith('s_') or t.startswith('v_mov_b32 v')) else 8
for si, (n, mt, hb) in enumerate(fsets):
    tau = int(SLOTS[n][1]); sidx = 2*mt + hb; lastset = sidx == 3
    cont = n+1 < NSL and SLOTS[n+1][0] == 'F'
    fresh = sidx == 0 and SLOTS[n-1][0] != 'F'
    if fresh:
        Y.A("s_setprio 2"); y_ci(n, 0)
        Y.lg(*CI.pop(0))
        for tp in range(8): y_read(si, tp)
        Y.lg(*CI.pop(0))
    if sidx == 1: y_ci(n, 1)
    wg = 2 if sidx == 0 else args.wg
    for c in range(2):
        for tp in range(8):
            T = 8*hb + tp; k = 8*c + tp
            if c == 0 and tp % wg == 0: Y.wait(ltag=('g', si, tp+wg-1))
            a = acc8(accof[(n, mt)]) + 4*c; f = yfrag(si, tp); assert (si, tp) in fdone
            if T == 0: assert not any(x[1][1:3] == (n, mt) for x in CI); Y.wait(ltag=('ci', n, mt, c))
            Y.A(f"v_mfma_f32_16x16x32_bf16 v[{a}:{a+3}], a[{f}:{f+3}], v[{64*c+4*T}:{64*c+4*T+3}], v[{a}:{a+3}]")
            mpos = len(Y.L); full = False
            if hb == 1 and k == 15: push_ep(accof[(n, mt)], tau, mt, len(Y.L)-1)
            if sidx == args.bs and k == args.bk and n+1 < NSL:
                assert args.bs == 3 or all((si+1, j) in fdone for j in range(8))
                Y.barrier(SLOTS[n+1]); full = True
                if not cont: Y.A("s_setprio 3")
            if lastset and cont and k == max(RKB[0]-2, args.bk if args.bs == 3 else 0): y_ci(n+1, 0)
            RK = RKB if lastset else (RKC if sidx == 2 else RKA)
            if not lastset or cont:
                for j in range(8):
                    if RK[j] == k: y_read(si+1, j)
            used = lambda: sum(nbytes(x) for x in Y.L[mpos:])
            if CI and not full and used() < 8: Y.lg(*CI.pop(0))
            quiet = args.sz0 <= 16*sidx + k <= args.sz1 or n >= NSL-2
            if STQ and quiet and not full and len(Y.L) == mpos: emit_st(); full = True
            while E and E[0][0] in ('q', 'chk'): emit_e()
            while not full and E and E[0][0] == 'v' and len(Y.L) >= e_min(E[0]) and used() + nbytes(E[0][1]) <= args.capb: emit_e()
            while E and E[0][0] == 'q': emit_e()
    if lastset and n in (9, 11): Y.stamp(f"s{n}")
    if lastset and n+1 < NSL and not cont:
        m = n+1
        while SLOTS[m][0] != 'F':
            Y.A("s_setprio 0")
            for it in DPLAN.get(m, []):
                if downer(m, it[1]) == 'Y':
                    Y.x_full(it)
                    for _ in range(3):
                        if E: emit_e()
            while E: emit_e()
            while STQ: emit_st()
            Y.barrier(SLOTS[m+1]); m += 1
while E: emit_e()
while STQ: emit_st()
assert O.nbar == Y.nbar, (O.nbar, Y.nbar)

dbg = args.dbg.split(',')
def drop(E_, pred, start=0): E_.L[:] = [x for i, x in enumerate(E_.L) if not (i >= start and pred(x))]
if 'nopw' in dbg: drop(O, lambda x: 'ds_write' in x)
if 'nost' in dbg: drop(Y, lambda x: 'buffer_store' in x)
if 'noep' in dbg: drop(Y, lambda x: x.strip().startswith('v_') and 'mfma' not in x, YF0)
F = Em(); A = F.A
if args.stamps:
    nn = max(len(O.names), len(Y.names))
    O.L.pop()
    for Em_ in (O, Y):
        while len(Em_.names) < nn: Em_.stamp("pad")
        Em_.stamp("end")
    O.A("s_branch L_fin")
    A("s_waitcnt vmcnt(0)")
    A("s_memrealtime s[6:7]"); A("s_waitcnt lgkmcnt(0)"); A(f"s_mov_b32 s{sST+nn+1}, s6")
    A(f"s_lshl_b32 s{sTMP}, s2, 3"); A(f"s_add_u32 s{sTMP}, s{sTMP}, s{sW8}"); A(f"s_mul_i32 s{sTMP}, s{sTMP}, {16*8}")
    A("v_mov_b32 v2, 0"); A("v_mov_b32 v1, 0")
    for i in range(nn+2):
        A(f"v_mov_b32 v0, s{sST+i}")
        A(f"buffer_store_dwordx2 v[0:1], v2, s[{sWS}:{sWS+3}], s{sTMP} offen offset:{8*i}")
        A("s_waitcnt vmcnt(0)")
    open(args.o[:-2] + ".names", "w").write(" ".join(O.names + ["rt1"]) + "\n" + " ".join(Y.names + ["rt1"]))
PF = Em(); A = PF.A
if args.pw8:
    XR = args.xr; NRW = XR
    A(f"s_load_dwordx2 s[{sX}:{sX+1}], s[0:1], 0")
    A("v_and_b32 v1, 63, v0"); A("v_lshrrev_b32 v2, 6, v0")
    A("v_mul_u32_u24 v3, 26, v1"); A("v_lshrrev_b32 v3, 8, v3")
    A("v_mul_u32_u24 v4, 10, v3"); A("v_sub_u32 v4, v1, v4")
    A("v_lshlrev_b32 v4, 7, v4"); A("v_min_u32 v4, 1076, v4")
    A(f"v_mul_u32_u24 v3, {256*2040}, v3"); A("v_add_u32 v4, v4, v3")
    A("v_mul_u32_u24 v2, 2040, v2"); A("v_add_u32 v4, v4, v2")
    A("s_lshr_b32 s4, s2, 3"); A(f"s_mul_i32 s4, s4, {8*2040}")
    A(f"s_and_b32 s5, s2, {7 & ~(XR-1)}"); A(f"s_mul_i32 s5, s5, {256*2040}"); A("s_add_u32 s4, s4, s5")
    A("v_add_u32 v4, s4, v4")
    A("v_add_u32 v5, -120, v4"); A("v_max_i32 v5, 0, v5")
    A(f"s_mov_b32 s{sX+2}, {XBYTES}"); A(f"s_mov_b32 s{sX+3}, 0x20000")
    m = (1 << (10*NRW)) - 1
    A(f"s_mov_b32 exec_lo, {hex(m & 0xffffffff)}"); A(f"s_mov_b32 exec_hi, {hex(m >> 32)}")
    A("s_waitcnt lgkmcnt(0)")
    for i, sl in enumerate((['S0', 'S1'] + SLOTS[1:])[:args.pfn]):
        tau = int(sl[1])
        A(f"s_mov_b32 s6, {tau*32*2040 + (960 if sl[0] == 'F' else 0)}")
        A(f"buffer_load_dword v{8+i}, v{5 if sl[0] == 'S' else 4}, s[{sX}:{sX+3}], s6 offen")
        A("s_barrier")
    A("s_waitcnt vmcnt(0)")
    A("s_endpgm")
hdr = open('standalone__weight_only_int_gptq__prompt.s.ref').read().split('\n')
H = [l for l in hdr if l.startswith(';') and '@launch' not in l and not l.startswith('; Override') and not l.startswith('; grid=')]
out = H + [f"; @launch grid=({GRID},1,1) block=(512,1,1) lds={LDS_BYTES}",
  '.amdgcn_target "amdgcn-amd-amdhsa--gfx950"', ".text", f".globl {NAME}", ".p2align 8", f".type {NAME},@function", f"{NAME}:"]
out += C.L[:4] + (["    s_branch L_main", "L_PF:"] + PF.L + ["L_main:"] if args.pw8 else []) + C.L[4:] + O.L + [".p2align 6", "L_Y:"] + Y.L + ["L_fin:"] + F.L
out += ["L_end:", "    s_endpgm", f".set CODE_BYTES, L_end - {NAME} - 128", '.section .rodata,"a"', ".p2align 6", f".amdhsa_kernel {NAME}",
  "  .amdhsa_next_free_vgpr 256", "  .amdhsa_next_free_sgpr 102", f"  .amdhsa_accum_offset {ACC_OFF}",
  "  .amdhsa_group_segment_fixed_size 0", "  .amdhsa_kernarg_size 64", "  .amdhsa_user_sgpr_count 2",
  "  .amdhsa_user_sgpr_kernarg_segment_ptr 1", "  .amdhsa_system_sgpr_workgroup_id_x 1", ".end_amdhsa_kernel"]
open(args.o, "w").write("\n".join(out) + "\n")
print(f"wrote {args.o}: C {len(C.L)} O {len(O.L)} Y {len(Y.L)} NVO={D.n} NVY={DY.n} nvA={nvA} bars={O.nbar}")
```

```python
import sys, argparse
from collections import deque
ap = argparse.ArgumentParser()
def opt(n, d, t=int): ap.add_argument('--'+n, type=t, default=d)
ap.add_argument('-o', default='k.s')
opt('stamps', 0); opt('pre', 0); opt('dbg', '', str); opt('xr', 2); opt('rot', 1); opt('pf', 1)
opt('cv', 4.5, float); opt('cm', 18.0, float)
opt('va', '2000,2500', str)
opt('xp', 0); opt('sp', '', str); opt('nys', 0); opt('few', 0); opt('noo', 0); opt('pw8', 0); opt('dly', 0); opt('ys', 1); opt('orl', 290); opt('ywb', 10); opt('pfn', 16); opt('xp2', 8); opt('xp3', 1); opt('s3', 0); opt('ylead', 6); opt('ypre', 100); opt('ywp', 1)
opt('yi', '50,135,148,147,147', str)
opt('od', '0,8,8,8,8,8', str); opt('il', 1); opt('oup', 7); opt('oc', 3); opt('yu', 12); opt('wi', 0); opt('ord', 24); opt('b1v', 0)
opt('D', 7); opt('bs', 2); opt('bk', 10); opt('wg', 4); opt('capb', 12)
opt('rka', '0,2,4,6,8,10,12,14', str); opt('rkc', '0,1,2,3,4,5,6,7', str); opt('rkb', '6,7,8,9,10,11,12,13', str)
opt('sz0', 30); opt('sz1', 41); opt('stmod', '', str)
opt('order', 'S2,S3,S4,S5,S6,F0,F1,F2,F3,F4,F5,F6', str); opt('xbk', 3); opt('xb0', 9); opt('xa', 7); opt('xb', 8); opt('swi', '7,8,9,10', str)
opt('pw', '3,4,7,8,9,10,11', str)
args = ap.parse_args()
IL = lambda s: [int(x) for x in s.split(',')]
NAME = "standalone__weight_only_int_gptq__prompt_kernel"
BLK = 1040; UNIT = 16*BLK; PAIR = 2*UNIT
SPARE0 = 8*UNIT; XS = 7680; LDS_BYTES = SPARE0 + 4*XS
XBYTES = 2048*2040; QBYTES = 102*3584*4; SBYTES = 17*3584*2; OBYTES = 2048*3584*2
ACC_OFF = 176; NOACC = 5
SLOTS = ['A'] + args.order.split(','); NSL = len(SLOTS)
PW = IL(args.pw)
XPAIR = {'S0': 3, 'S1': 1}
NT = 7
SLX = SLOTS + ['X7']
for n in range(1, NSL+1): XPAIR[SLX[n]] = [2, 0, 1][(n-1) % 3]
PREG = [6 + (p % 3) for p in range(8)]
for p in range(NT):
    fs = SLOTS.index(f"F{p}"); assert PW[p] < fs
    ss = 0 if p < 2 else SLOTS.index(f"S{p}"); assert PW[p] > ss
    if p >= 3: assert PW[p] > SLOTS.index(f"F{p-3}")
    if p+NOACC < NT: assert PW[p] < SLOTS.index(f"S{p+NOACC}")
NY0 = SLOTS.index('F0')
DPLAN = {n: [(SLX[n+2], j) for j in range(8)] for n in range(1, NSL-1)}
assert SLOTS[-1][0] == 'F' and SLOTS[-2][0] == 'F'
def downer(n, j):
    if n < NY0: return 'O' if j < IL(args.od)[n-1] else 'Y'
    return 'O' if SLOTS[n][0] == 'F' else 'Y'
vA_, vB_ = 128, 129
vT = [130, 131, 132]; vMA, vMB = 133, 134; vC = 135
vF = [136, 137, 138, 139]
vM = {1:140, 4:141, 7:142, 0:143, 3:144, 6:145}
vMC, vSH1, vSH2, vS2, vZ2, vQm, vQt, vSO, vWrd, vOSZ = range(146, 156)
vR = [168, 169]; vDO, vDY, vP, vOUT, vOUT2 = 170, 171, 172, 173, 174
sX, sQ, sS, sZ, sO, sWS = 8, 12, 16, 20, 24, 28
sP1 = 32
(sK7, sM30, sW8, sCB, sRB, sROT, sSTRIP, sROLE, sL1, sXB, sOB, sTMP, sTMP2, sLQ, sLS, sXR, sCOL, sU, sHI) = range(34, 53)
sPFB = 53; sTX0 = 54; sTO0 = 62; sST = 82

class Em:
    nbar = 0; nost = False
    def __init__(s): s.L = []; s.vmq = []; s.lgq = []; s.names = []
    def A(s, t): s.L.append("    " + t)
    def vm(s, t, tag): s.A(t); s.vmq.append(tag)
    def lg(s, t, tag): s.A(t); s.lgq.append(tag)
    def wait(s, vtag=None, ltag=None, lall=False):
        parts = []
        if vtag is not None and vtag in s.vmq:
            i = len(s.vmq) - 1 - s.vmq[::-1].index(vtag); n = len(s.vmq) - 1 - i; del s.vmq[:i+1]
            parts.append(f"vmcnt({min(n,63)})")
        if lall:
            if s.lgq: parts.append("lgkmcnt(0)"); s.lgq.clear()
        elif ltag is not None and ltag in s.lgq:
            i = len(s.lgq) - 1 - s.lgq[::-1].index(ltag); n = len(s.lgq) - 1 - i; del s.lgq[:i+1]
            parts.append(f"lgkmcnt({min(n,15)})")
        if parts: s.A("s_waitcnt " + " ".join(parts))
    def stamp(s, nm):
        if args.stamps and not (s.nost and nm not in ('pad', 'end')) and not (args.few and nm not in (('A', 's5', 'end', 'pad') if args.few == 1 else ('a0', 'A', 's5', 's7', 's13', 'end', 'pad'))):
            s.A("s_waitcnt lgkmcnt(0)"); s.lgq.clear()
            s.A("s_memtime s[6:7]"); s.A("s_waitcnt lgkmcnt(0)")
            s.A(f"s_mov_b32 s{sST+len(s.names)}, s6"); s.names.append(nm); assert len(s.names) <= 15
            if args.few == 2 and nm != 'end':
                s.A("s_memrealtime s[6:7]"); s.A("s_waitcnt lgkmcnt(0)")
                s.A(f"s_mov_b32 s{sST+len(s.names)}, s6"); s.names.append(nm + "_r")
    def barrier(s, slot):
        tags = [t for t in s.vmq if t[0] == 'x' and t[1] == slot]
        s.wait(vtag=tags[-1] if tags else None, lall=True)
        s.A("s_barrier"); s.nbar += 1
    def x_pre(s, it):
        sl, j = it; tau = int(sl[1])
        if j: s.A(f"s_add_u32 s{sU}, s{sTX0+tau}, {j*2040}")
        s.A(f"s_add_u32 m0, s{sL1}, {XPAIR[sl]*PAIR + j*BLK}")
    def x_go(s, it):
        sl, j = it; tau = int(sl[1])
        s.vm(f"buffer_load_dwordx4 v{vDY if sl[0] == 'F' else vDO}, s[{sX}:{sX+3}], s{sU if j else sTX0+tau} offen lds", ('x', sl, j))
    def x_full(s, it):
        sl, j = it; tau = int(sl[1])
        s.A(f"s_add_u32 m0, s{sL1}, {XPAIR[sl]*PAIR + j*BLK}")
        s.A(f"s_add_u32 s{sU}, s{sTX0+tau}, {j*2040}")
        s.x_go(it)

C = Em(); A = C.A
GRID = 256
A("s_bfe_u32 s4, s2, 0x20001")
A("s_lshl_b32 s4, s4, 5")
A("s_lshr_b32 s5, s2, 3")
A("s_add_u32 s{IDX}, s4, s5".format(IDX=53))
A("s_cmp_ge_u32 s2, 256")
A("s_cbranch_scc1 L_end")
A("s_cmp_ge_u32 s53, 126")
A("s_cbranch_scc1 L_end")
if args.stamps: A("s_memrealtime s[98:99]"); A("s_memtime s[100:101]"); C.names += ["rt0", "t0"]
A(f"s_load_dwordx2 s[{sQ}:{sQ+1}], s[0:1], 8")
A(f"s_load_dwordx2 s[{sS}:{sS+1}], s[0:1], 16")
A(f"s_load_dwordx2 s[{sZ}:{sZ+1}], s[0:1], 24")
A(f"s_load_dwordx2 s[{sX}:{sX+1}], s[0:1], 0")
A(f"s_load_dwordx2 s[{sO}:{sO+1}], s[0:1], 40")
if args.stamps: A(f"s_load_dwordx2 s[{sWS}:{sWS+1}], s[0:1], 56")
vL, vI, vH, vCol, vX, vY, vG = 4, 5, 6, 7, 8, 9, 10
A(f"v_lshrrev_b32 v{vX}, 6, v0")
A(f"v_and_b32 v{vL}, 63, v0")
A(f"v_readfirstlane_b32 s{sW8}, v{vX}")
XR = args.xr; XC = 28//XR
A(f"s_and_b32 s{sTMP}, s2, 7")
A(f"s_lshr_b32 s{sTMP2}, s2, 3")
if args.pf:
    A("s_getpc_b64 s[4:5]")
    A(f"s_lshl_b32 s3, s{sTMP2}, 5")
    A(f"v_and_b32 v2, 3, v0")
    A(f"v_lshl_add_u32 v1, v{vX}, 2, v2")
    A("v_add_u32 v1, s3, v1")
    A("v_and_b32 v1, 255, v1")
    A("v_lshlrev_b32 v1, 7, v1")
    A("v_min_u32 v1, CODE_BYTES, v1")
    C.vm("global_load_dword v3, v1, s[4:5]", ('pf',))
sEX = sROLE
A(f"s_mul_i32 s{sRB}, s53, 4682"); A(f"s_lshr_b32 s{sRB}, s{sRB}, 16")
A(f"s_mul_i32 s{sROT}, s{sRB}, 14"); A(f"s_sub_u32 s{sROT}, s53, s{sROT}")
A(f"s_and_b32 s{sCB}, s2, 1"); A(f"s_mul_i32 s{sCB}, s{sCB}, 14"); A(f"s_add_u32 s{sCB}, s{sCB}, s{sROT}")
A(f"s_and_b32 s{sSTRIP}, s{sW8}, 3")
A(f"s_lshl_b32 s{sCOL}, s{sCB}, 7")
A(f"s_lshl_b32 s{sTMP2}, s{sSTRIP}, 5")
A(f"s_add_u32 s{sCOL}, s{sCOL}, s{sTMP2}")
for (s, nb) in ((sQ,QBYTES),(sS,SBYTES),(sZ,SBYTES),(sX,XBYTES)):
    A(f"s_mov_b32 s{s+2}, {nb}"); A(f"s_mov_b32 s{s+3}, 0x20000")
A(f"v_lshrrev_b32 v{vH}, 5, v{vL}")
A(f"v_lshrrev_b32 v{vG}, 4, v{vL}")
A(f"v_and_b32 v{vQt}, 7, v{vL}")
A(f"s_lshl_b32 s{sTMP2}, s{sCOL}, 2")
A(f"v_lshl_add_u32 v{vQt}, v{vQt}, 4, s{sTMP2}")
A(f"v_and_b32 v{vCol}, 3, v{vL}"); A(f"v_bfe_u32 v{vY}, v{vL}, 2, 2"); A(f"v_lshl_or_b32 v{vCol}, v{vCol}, 2, v{vY}")
if args.stamps: A(f"s_mov_b32 s{sWS+2}, 0x10000000"); A(f"s_mov_b32 s{sWS+3}, 0x20000")
PFPOS = len(C.L)
A(f"s_cmp_ge_u32 s{sW8}, 4")
A("s_cbranch_scc1 L_Y")

def emit_xsetup(E):
    A = E.A
    A(f"v_and_b32 v{vI}, 31, v{vL}")
    A(f"v_mul_u32_u24 v{vDO}, 480, v{vH}")
    A(f"v_lshlrev_b32 v12, 5, v{vH}")
    A(f"v_add_u32 v12, {1920-480}, v12")
    A(f"v_cmp_lt_u32 vcc, 29, v{vI}")
    A(f"s_cmp_eq_u32 s{sRB}, {args.xa}"); A(f"s_cselect_b32 s{sEX}, 1, 0")
    A(f"s_cmp_eq_u32 s{sRB}, {args.xb}"); A(f"s_cselect_b32 s{sEX}, 1, s{sEX}")
    A(f"s_mul_i32 s{sTMP}, s{sRB}, 14")
    A(f"s_cmp_gt_u32 s{sRB}, {args.xa}"); A(f"s_addc_u32 s{sTMP}, s{sTMP}, 0")
    A(f"s_cmp_gt_u32 s{sRB}, {args.xb}"); A(f"s_addc_u32 s{sRB}, s{sTMP}, 0")
    A(f"s_mul_i32 s{sROT}, s{sROT}, {args.rot}")
    A(f"s_cmp_ge_u32 s{sROT}, 7"); A(f"s_cselect_b32 s{sTMP}, 7, 0"); A(f"s_sub_u32 s{sROT}, s{sROT}, s{sTMP}")
    A(f"s_mul_i32 s{sXB}, s{sRB}, {16*2040}")
    A(f"s_mul_i32 s{sTMP}, s{sSTRIP}, {8*2040}")
    A(f"v_cndmask_b32 v{vDO}, v{vDO}, v12, vcc")
    A(f"v_lshl_add_u32 v{vDO}, v{vI}, 4, v{vDO}")
    A(f"s_add_u32 s{sXB}, s{sXB}, s{sTMP}")
    A(f"s_mul_i32 s{sL1}, s{sSTRIP}, {8*BLK}")
def emit_mod7(E, r, tau):
    E.A(f"s_add_u32 s{r}, s{sROT}, {tau}"); E.A(f"s_sub_u32 s{sU}, s{r}, 7"); E.A(f"s_min_u32 s{r}, s{r}, s{sU}")
def emit_tx(E, tau):
    A = E.A
    if tau == 7:
        A(f"s_lshr_b32 s{sTX0+7}, s{sSTRIP}, 1"); A(f"s_mul_i32 s{sTX0+7}, s{sTX0+7}, {16*2040}")
        A(f"s_sub_u32 s{sTX0+7}, s{sXB}, s{sTX0+7}"); A(f"s_add_u32 s{sTX0+7}, s{sTX0+7}, {224*2040}")
        A(f"s_cmp_lt_u32 s{sSTRIP}, 2"); A("s_cbranch_scc1 L_dx"); A(f"v_mov_b32 v{vDO}, v{vDY}"); E.L.append("L_dx:")
        return
    emit_mod7(E, sTX0+tau, tau)
    A(f"s_mul_i32 s{sTX0+tau}, s{sTX0+tau}, {32*2040}"); A(f"s_add_u32 s{sTX0+tau}, s{sTX0+tau}, s{sXB}")
def emit_dy(E):
    A = E.A
    A(f"v_and_b32 v12, 15, v{vL}")
    A(f"v_mul_u32_u24 v{vDY}, 240, v{vG}")
    A(f"v_lshl_add_u32 v{vDY}, v12, 4, v{vDY}")
    A(f"v_cmp_eq_u32 vcc, 15, v12")
    A(f"v_add_u32 v{vDY}, 960, v{vDY}")
    A(f"v_lshlrev_b32 v13, 4, v{vG}")
    A(f"v_add_u32 v13, 1984, v13")
    A(f"v_min_u32 v13, 2024, v13")
    A(f"v_cndmask_b32 v{vDY}, v{vDY}, v13, vcc")
vPF = 175
def emit_pfsetup(E):
    A = E.A; RS = 8*(28//args.xr)
    A(f"v_mul_u32_u24 v12, 26, v{vL}"); A("v_lshrrev_b32 v12, 8, v12")
    A(f"v_mul_u32_u24 v13, 10, v12"); A(f"v_sub_u32 v13, v{vL}, v13")
    A("v_lshlrev_b32 v13, 7, v13"); A("v_min_u32 v13, 1076, v13")
    A(f"v_mul_u32_u24 v12, {RS*2040}, v12"); A(f"v_add_u32 v{vPF}, v12, v13")
    A(f"s_lshr_b32 s{sPFB}, s2, {3 + (args.xr.bit_length()-1)}"); A(f"s_lshl_b32 s{sPFB}, s{sPFB}, 3"); A(f"s_add_u32 s{sPFB}, s{sPFB}, s{sW8}")
    A(f"s_lshl_b32 s{sU}, s{sRB}, 8"); A(f"s_add_u32 s{sPFB}, s{sPFB}, s{sU}"); A(f"s_mul_i32 s{sPFB}, s{sPFB}, 2040")
def emit_pf(E, q0, nq, back, dst):
    RS = 8*(28//args.xr)
    E.A(f"s_add_u32 s{sU}, s{sPFB}, {q0*RS*2040 + (960 if back else 0)}")
    if not back: E.A(f"s_sub_u32 s{sU}, s{sU}, 120"); E.A(f"s_max_i32 s{sU}, s{sU}, 0")
    m = (1 << (10*nq)) - 1
    E.A(f"s_mov_b32 exec_lo, {hex(m & 0xffffffff)}"); E.A(f"s_mov_b32 exec_hi, {hex(m >> 32)}")
    E.vm(f"buffer_load_dword v{dst}, v{vPF}, s[{sX}:{sX+3}], s{sU} offen", ('xpf',))
    E.A("s_mov_b64 exec, -1")
def emit_spsetup(E):
    A = E.A
    A(f"s_lshr_b32 s{sPFB}, s2, {3 + (args.xr.bit_length()-1)}"); A(f"s_lshl_b32 s{sPFB}, s{sPFB}, 2"); A(f"s_add_u32 s{sPFB}, s{sPFB}, s{sSTRIP}")
    A(f"s_lshl_b32 s{sU}, s{sRB}, 8"); A(f"s_add_u32 s{sPFB}, s{sPFB}, s{sU}"); A(f"s_mul_i32 s{sPFB}, s{sPFB}, 2040")
def emit_sp(E, q, back):
    RS = 4*(28//args.xr)
    E.A(f"s_add_u32 s{sU}, s{sPFB}, {q*RS*2040 + (960 if back else 0)}")
    if not back: E.A(f"s_sub_u32 s{sU}, s{sU}, 120"); E.A(f"s_max_i32 s{sU}, s{sU}, 0")
    for i in range(10):
        E.A(f"s_buffer_load_dword s{70 + i}, s[{sX}:{sX+3}], s{sU} offset:{min(128*i, 1076)}")
SP = {}
for it in args.sp.split(','):
    if it:
        pos, q0, nq, back = it.split(':'); SP.setdefault(pos, []).extend([(q, int(back)) for q in range(int(q0), int(q0)+int(nq))])
def do_sp(E, pos):
    for q, back in SP.get(pos, []): emit_sp(E, q, back)
def emit_consts(E):
    A = E.A
    A(f"v_mov_b32 v{vMA}, 0x0007000e"); A(f"v_mov_b32 v{vMB}, 0x00380070"); A(f"v_mov_b32 v{vMC}, 0x01c00380")
    A(f"s_mov_b32 s{sK7}, {hex((127+17) << 23)}"); A(f"s_mov_b32 s{sM30}, 0x3fffffff")

if args.xp:
    tail = C.L[PFPOS:]; del C.L[PFPOS:]; emit_pfsetup(C); C.L.extend(tail)
NQ = -(-256 // (8*(28//args.xr)))
def mix(dst, src, hi, pos):
    return f"v_fma_mix_f32 v{dst}, v{src}, v{vM[pos]}, -v{vC} op_sel:[{hi},0,0] op_sel_hi:[1,0,0]"
TR2 = [[vT[0], vT[1], vA_, vT[2], vB_], [156, 157, 158, 159, 160]]
vU = [161, 162]
FL = [(0,0,1),(1,0,4),(2,0,7),(3,0,1),(4,0,4),(0,1,0),(1,1,3),(2,1,6),(3,1,0),(4,1,3)]
class Deq:
    def __init__(s, E): s.E = E; s.V = deque(); s.pos = 0; s.produced = {}; s.issued = set(); s.rawq = deque(); s.par = 0; s.slots = None
    def vop(s, text, needs=(), prod=None): s.V.append((text, tuple(needs), prod))
    def dword(s, p, nd, d0, ne):
        s.par ^= 1
        TRs = TR2[s.par]; a_, b_ = TRs[2], TRs[4]
        ext = [(f"v_add_u32 v{a_}, v{p}, v{p}", tuple(nd), None), (f"v_lshrrev_b32 v{b_}, 8, v{p}", tuple(nd), None),
               (f"v_and_b32 v{TRs[0]}, v{vMA}, v{a_}", (), None), (f"v_and_b32 v{TRs[1]}, v{vMB}, v{a_}", (), None),
               (f"v_and_b32 v{a_}, v{vMC}, v{a_}", (), None), (f"v_and_b32 v{TRs[3]}, v{vMA}, v{b_}", (), None),
               (f"v_and_b32 v{b_}, v{vMB}, v{b_}", (), None)]
        body = []
        def cvt(e): body.append((f"v_cvt_pk_bf16_f32 v{d0+e}, v{vF[(2*e)%4]}, v{vF[(2*e+1)%4]}", (), d0+e))
        for e in range(ne):
            for k in (2*e, 2*e+1):
                ti, hi, pos = FL[k]; body.append((mix(vF[k%4], TRs[ti], hi, pos), (), None))
            if e > 0: cvt(e-1)
        cvt(ne-1)
        if args.il and s.slots is not None and nd:
            start, n = s.slots
            V = list(s.V); prev = V[start:start+n]; rest = V[start+n:]; merged = []
            for i, op in enumerate(prev):
                merged.append(op)
                if i % 2 == 1 and ext: merged.append(ext.pop(0))
            s.V = deque(V[:start] + merged + ext + rest)
        else: s.V.extend(ext)
        s.slots = (len(s.V), len(body)); s.V.extend(body)
    def consts(s, rs, rz, nd):
        s.vop(f"v_mul_f32 v{vM[7]}, s{sK7}, v{rs}", nd); s.vop(f"v_mul_f32 v{vC}, v{rz}, v{rs}", nd)
        for (pa, pb, k) in ((6,7,'2.0'),(4,6,'4.0'),(3,4,'2.0'),(1,3,'4.0'),(0,1,'2.0')): s.vop(f"v_mul_f32 v{vM[pa]}, {k}, v{vM[pb]}")
    def finalize(s, rawreg):
        s.last = {}; s.first = {}; s.wpos = {}
        for i, (_, nd, prod) in enumerate(s.V):
            for it in nd: s.last[it] = i; s.first.setdefault(it, i)
            if prod is not None: s.wpos.setdefault(prod, i)
        for it, regs in rawreg.items():
            for r in regs:
                if r in s.wpos: assert s.wpos[r] > s.last[it], (it, r)
        s.n = len(s.V)
    def emit(s):
        while s.rawq and s.rawq[0][0] <= s.pos: s.rawq.popleft()[1]()
        text, nd, prod = s.V.popleft()
        for it in nd:
            assert it in s.issued, it
            s.E.wait(ltag=it, vtag=it)
        s.E.A(text); s.pos += 1
        if prod is not None: s.produced[prod] = len(s.E.L)-1
def w_dma(E, i, so, mask48=False):
    E.A(f"s_add_u32 m0, s{sXR}, {i*1024}"); E.A(f"s_mov_b32 s{sLQ}, {so}")
    if mask48: E.A("s_mov_b32 exec_hi, 0xffff")
    E.vm(f"buffer_load_dwordx4 v{vQt if i == 6 else vQm}, s[{sQ}:{sQ+3}], s{sLQ} offen lds", ('w', i))
    if mask48: E.A("s_mov_b32 exec_hi, -1")

O = Em(); O.vmq = list(C.vmq); O.names = list(C.names); A = O.A
A("s_setprio 2")
A(f"s_mul_i32 s{sXR}, s{sSTRIP}, {XS}"); A(f"s_add_u32 s{sXR}, s{sXR}, {SPARE0}")
A(f"v_bfe_u32 v11, v{vL}, 3, 1")
A(f"v_mad_u32_u24 v{vY}, v11, 24, v{vG}")
A(f"v_mul_u32_u24 v{vQm}, 14336, v{vY}")
A(f"v_add_u32 v{vQm}, v{vQm}, v{vQt}")
A(f"v_bfe_u32 v{vY}, v{vL}, 4, 1")
A(f"v_lshl_or_b32 v{vCol}, v{vCol}, 1, v{vY}")
A(f"v_add_u32 v{vY}, s{sCOL}, v{vCol}")
A(f"v_mul_u32_u24 v{vSO}, {4*7168}, v{vH}")
A(f"v_lshl_add_u32 v{vSO}, v{vY}, 1, v{vSO}")
raw = []
for g in range(5): raw += [('S',g),('Z',g)] + [('q',6*g+k) for k in range(6 if g < 4 else 4)]
rr = {it: 90+i for i, it in enumerate(raw)}
for g in range(2): A(f"v_mov_b32 v{rr[('S',g)]}, 0"); A(f"v_mov_b32 v{rr[('Z',g)]}, 0")
A(f"s_movk_i32 s{sLS}, 7168")
D = Deq(O)
def pt(pj): return ('p', pj >> 1)
for g in range(5):
    D.consts(rr[('S',g)], rr[('Z',g)], [('S',g),('Z',g)])
    if g < 4:
        for pj in range(6*g, 6*g+6): D.dword(rr[('q',pj)], [pt(pj)], 5*pj, 5)
    else:
        e0, e1, e2, e3 = [rr[('q',24+k)] for k in range(4)]; nd = [pt(24), pt(26)]
        D.vop(f"v_and_b32 v{vS2}, s{sM30}, v{e0}", nd); D.vop(f"v_and_b32 v{vZ2}, s{sM30}, v{e1}", nd)
        D.vop(f"v_lshrrev_b32 v{vS2}, v{vSH1}, v{vS2}"); D.vop(f"v_lshrrev_b32 v{vZ2}, v{vSH1}, v{vZ2}")
        D.vop(f"v_lshl_or_b32 v{vS2}, v{e1}, v{vSH2}, v{vS2}", nd); D.vop(f"v_lshl_or_b32 v{vZ2}, v{e2}, v{vSH2}, v{vZ2}", nd)
        D.dword(vS2, [], 120, 5); D.dword(vZ2, [], 125, 3)
rawregs = {('p', k): [rr[('q',2*k)], rr[('q',2*k+1)]] for k in range(14)}
for g in range(5): rawregs[('S',g)] = [rr[('S',g)]]; rawregs[('Z',g)] = [rr[('Z',g)]]
D.finalize(rawregs)
def o_sz(g):
    if g < 2:
        so = f"s{sLS}" if g else "0"
        O.vm(f"buffer_load_short_d16_hi v{rr[('S',g)]}, v{vSO}, s[{sS}:{sS+3}], {so} offen", ('S',g))
        O.vm(f"buffer_load_short_d16_hi v{rr[('Z',g)]}, v{vSO}, s[{sZ}:{sZ+3}], {so} offen", ('Z',g))
    else:
        O.wait(vtag=('osz',))
        O.lg(f"ds_read_u16_d16_hi v{rr[('S',g)]}, v{vSO} offset:{6912 + (g-2)*64}", ('S',g))
        O.lg(f"ds_read_u16_d16_hi v{rr[('Z',g)]}, v{vSO} offset:{7296 + (g-2)*64}", ('Z',g))
    D.issued.update([('S',g),('Z',g)])
def o_w(i): w_dma(O, i, (4*i if i < 6 else 96)*14336, i == 6)
def o_rd(k):
    i = k >> 1; r = rr[('q',2*k)]; O.wait(vtag=('w', i))
    o0 = 4*i + 2*(k & 1)
    O.lg(f"ds_read2st64_b32 v[{r}:{r+1}], v{vWrd} offset0:{o0} offset1:{o0+1}", ('p', k)); D.issued.add(('p', k))
def o_osz():
    O.A(f"s_add_u32 m0, s{sXR}, 6912"); O.A("s_mov_b64 exec, 0xffffff")
    O.vm(f"buffer_load_dwordx4 v{vOSZ}, s[{sS}:{sS+3}], 0 offen lds", ('osz0',))
    O.A(f"s_add_u32 m0, s{sXR}, 7296"); O.A("s_nop 0")
    O.vm(f"buffer_load_dwordx4 v{vOSZ}, s[{sZ}:{sZ+3}], 0 offen lds", ('osz',))
    O.A("s_mov_b64 exec, -1")
A("s_waitcnt lgkmcnt(0)")
if args.stamps: A(f"s_mov_b32 s{sST}, s98"); A(f"s_mov_b32 s{sST+1}, s100")
if args.pre == 2: O.stamp("karg")
o_w(0); o_sz(0)
if args.xp: emit_pf(O, 0, args.xp, False, 166)
o_w(1); o_sz(1)
A(f"v_add_u32 v12, v11, v{vG}")
A(f"v_mul_u32_u24 v12, 14336, v12")
A(f"v_add_u32 v{vQt}, v{vQt}, v12")
o_w(2)
GC = sum(g << (5*i) for i, g in enumerate([2,3,16,6,7,16]))
A(f"v_lshrrev_b32 v12, 2, v{vL}"); A(f"v_min_u32 v12, 5, v12"); A(f"v_mul_u32_u24 v12, 5, v12")
A(f"s_mov_b32 s{sTMP}, {GC}"); A(f"v_lshrrev_b32 v12, v12, s{sTMP}"); A(f"v_and_b32 v12, 31, v12")
if args.oup > 3: o_w(3)
A(f"v_mul_u32_u24 v12, 7168, v12")
A(f"v_and_b32 v13, 3, v{vL}")
A(f"s_lshl_b32 s{sTMP2}, s{sCOL}, 1")
A(f"v_lshl_add_u32 v13, v13, 4, s{sTMP2}")
A(f"v_add_u32 v{vOSZ}, v12, v13")
o_osz()
A(f"v_lshlrev_b32 v{vWrd}, 2, v{vCol}")
A(f"v_lshl_add_u32 v{vWrd}, v{vH}, 7, v{vWrd}")
A(f"v_add_u32 v{vWrd}, s{sXR}, v{vWrd}")
emit_consts(O)
if args.oup > 4: o_w(4)
for g in range(2,5): A(f"v_mov_b32 v{rr[('S',g)]}, 0"); A(f"v_mov_b32 v{rr[('Z',g)]}, 0")
A(f"v_mul_u32_u24 v{vSH1}, 18, v{vH}")
A(f"v_sub_u32 v{vSH2}, 30, v{vSH1}")
if args.oup > 5: o_w(5)
A(f"v_mul_u32_u24 v{vSO}, 192, v{vH}")
A(f"v_lshl_add_u32 v{vSO}, v{vCol}, 1, v{vSO}")
A(f"v_add_u32 v{vSO}, s{sXR}, v{vSO}")
if args.oup > 6: o_w(6)
emit_xsetup(O)
emit_dy(O)
A(f"v_mul_u32_u24 v{vR[0]}, {BLK}, v{vI}")
A(f"v_lshl_add_u32 v{vR[0]}, v{vH}, 9, v{vR[0]}")
A(f"v_add_u32 v{vR[1]}, {2*PAIR}, v{vR[0]}")
A(f"v_and_b32 v12, 15, v{vL}")
A(f"v_bfe_u32 v13, v{vL}, 4, 1")
A(f"s_lshl_b32 s{sTMP2}, s{sSTRIP}, 12"); A(f"s_add_u32 s{sTMP2}, s{sTMP2}, {6*UNIT}")
A(f"v_lshl_add_u32 v{vP}, v12, 4, s{sTMP2}")
A(f"v_lshl_add_u32 v{vP}, v13, 10, v{vP}")
A(f"v_lshl_add_u32 v{vP}, v{vH}, 8, v{vP}")
vRX, vPX = 164, 165
A(f"v_mul_u32_u24 v{vRX}, {BLK}, v12")
A(f"v_lshl_add_u32 v{vRX}, v{vG}, 8, v{vRX}")
A(f"v_add_u32 v{vRX}, {XPAIR['X7']*PAIR}, v{vRX}")
A(f"v_lshl_add_u32 v{vPX}, v{vL}, 4, s{sTMP2}")
otx = deque(range(8))
cap_ = lambda x, i: min(x, args.orl + 4*i) if args.ys else x
sched = [(cap_(max(0, D.first[('p', k)] - args.ord), k), (lambda k=k: o_rd(k))) for k in range(14)]
sched += [(cap_(D.first[('S', g)] - args.ord, 12+g), (lambda g=g: o_sz(g))) for g in (2,3,4)]
sched += [(8 + 10*(i-args.oup), (lambda i=i: o_w(i))) for i in range(args.oup, 7)]
D.rawq = deque(sorted(sched, key=lambda t: t[0]))
O.stamp("issued")
VA = IL(args.va)
prodat = {t: max(D.wpos[4*t+k] for k in range(4)) + 3 for t in range(32)}
ev = []; time = 0.0; vi = 0; nk = [0,0]; barT = {}; lastM = -99; Q = []
while vi < D.n or any(k < 32 for k in nk):
    j = len(barT)
    if j < 2 and (time >= VA[j] or (vi >= D.n and (j == 0 or nk[0] >= 28))): barT[j] = time; ev.append(('B', j)); time += 20; continue
    cand = [j for j in range(2) if j in barT and time >= barT[j] + 110 and nk[j] < 32 and prodat[nk[j]] <= vi + (99 if vi >= D.n else 0)]
    if cand and (time - lastM >= 30 or vi >= D.n):
        j = cand[0]; time = max(time, lastM + 32); ev.append(('M',)); Q.append((j, nk[j])); nk[j] += 1; lastM = time; time += args.cm
    elif vi < D.n: ev.append(('V',)); vi += 1; time += args.cv
    else: time += 4
print(f"phase A model: {time:.0f} cycles")
for n in range(1, NSL):
    if SLOTS[n][0] == 'S': Q += [(int(SLOTS[n][1]), t) for t in range(32)]
open_t = set(); rp = [0]; mp = [0]; lastm = {}
def oacc(tau):
    i = tau % NOACC
    return ('a', 32 + 16*i) if i < 3 else ('v', 128 + 16*(i-3))
def o_read(mx=1):
    n = 0
    while n < mx and rp[0] < len(Q) and rp[0] - mp[0] < args.D + 1 and Q[rp[0]][0] in open_t:
        tau, t = Q[rp[0]]; p = XPAIR[f"S{tau}"]; f = 4*(rp[0] % 8)
        O.lg(f"ds_read_b128 a[{f}:{f+3}], v{vR[p >> 1]} offset:{(p & 1)*PAIR + 16*t}", ('f', rp[0])); rp[0] += 1; n += 1
def o_mfma():
    i = mp[0]; tau, t = Q[i]; assert i < rp[0], "frag not read"
    if ('f', i) in O.lgq: O.wait(ltag=('f', min(i+1, rp[0]-1)) if rp[0] - i > 5 else ('f', i))
    dist = len(O.L) - 1 - max(D.produced[4*t+k] for k in range(4))
    if dist < 2: O.A(f"s_nop {1-dist}")
    fl, a = oacc(tau); f = 4*(i % 8)
    c = "0" if t == 0 else f"{fl}[{a}:{a+15}]"
    O.A(f"v_mfma_f32_32x32x16_bf16 {fl}[{a}:{a+15}], a[{f}:{f+3}], v[{4*t}:{4*t+3}], {c}")
    mp[0] += 1; lastm[tau] = len(O.L)-1
def pwrites(p):
    fl, a0 = oacc(p)
    return [f"ds_write_b128 v{vP}, {fl}[{a0+4*a}:{a0+4*a+3}] offset:{(PREG[p]-6)*UNIT + (a>>1)*2048 + (a&1)*512}" for a in range(4)]
first = True; cur = [0]; fillq = deque(); pend = [None]; after_last = [None]; run_slot = [0]
def o_need_tx(tau):
    if tau in otx: otx.remove(tau); emit_tx(O, tau)
def o_load_interval(n):
    ws = [('w', w, p) for p in range(NT) if PW[p] == n for w in pwrites(p)]
    xs = [('x', it) for it in DPLAN.get(n, []) if downer(n, it[1]) == 'O']
    while ws or xs:
        for _ in range(args.wi if args.wi else 99):
            if ws: fillq.append(ws.pop(0))
        if xs: fillq.append(xs.pop(0))
def o_fill(now=False):
    it = fillq[0]
    if it[0] == 'w':
        done = sum(1 for q in Q[:mp[0]] if q[0] == it[2]) == 32
        if not now and (not done or len(O.L) < lastm[it[2]] + 13): return
        assert done
        if len(O.L) < lastm[it[2]] + 13: O.A(f"s_nop {lastm[it[2]] + 13 - len(O.L) - 1}")
        fillq.popleft(); O.lg(it[1], ('pw',))
    else:
        fillq.popleft()
        if it[1] == ('X7', 0):
            assert now and all(f[0] == 'x' for f in fillq)
            O.wait(vtag=('x', SLOTS[-1], 7))
            O.A(f"s_cmp_eq_u32 s{sEX}, 0"); O.A("s_cbranch_scc1 L_nox")
        o_need_tx(int(it[1][0][1]))
        if now:
            O.x_full(it[1])
            if it[1] == ('X7', 7): O.L.append("L_nox:")
        else: O.x_pre(it[1]); pend[0] = it[1]
def o_flush():
    if pend[0]: O.x_go(pend[0]); pend[0] = None
    while fillq: o_fill(True)
def o_bar(n):
    o_flush(); O.barrier(SLOTS[n]); cur[0] = n; o_load_interval(n)
    if args.xp and n == args.xp3: emit_pf(O, 0, NQ, True, 166)
    if SLOTS[n][0] == 'S': open_t.add(int(SLOTS[n][1]))
def o_after_mfma(endidx):
    if pend[0]: O.x_go(pend[0]); pend[0] = None
    if rp[0] >= endidx and cur[0] == run_slot[0] and (len(D.V) <= args.b1v or mp[0] >= endidx - 3):
        if after_last[0] is None: after_last[0] = mp[0]
        if mp[0] > after_last[0] or not O.lgq:
            after_last[0] = None; o_bar(cur[0]+1)
            if SLOTS[cur[0]][0] != 'S': O.A("s_setprio 3")
    o_read(2)
    if fillq and cur[0] >= 1 and SLOTS[cur[0]][0] == 'S' and (fillq[0][0] == 'w' or mp[0] % args.oc == 0): o_fill()
for e in ev:
    if e[0] == 'V':
        D.emit()
        if first: O.stamp("firstW"); first = False
        if D.pos % 2 == 0: o_read(1)
    elif e[0] == 'B':
        if args.ys and e[1] == 1:
            while D.rawq: D.rawq.popleft()[1]()
        if args.pre: O.stamp(f"pa{e[1]}")
        O.barrier(f"S{e[1]}"); open_t.add(e[1])
        if args.xp and e[1] == 0 and args.xp < NQ: emit_pf(O, args.xp, NQ-args.xp, False, 166)
        if not args.pre: O.stamp(f"a{e[1]}")
        o_read(2)
    else: o_mfma(); o_after_mfma(64)
assert not D.V and not D.rawq and cur[0] == 1
O.stamp("A"); OA_END = len(O.L)
for n in range(1, NSL):
    if SLOTS[n][0] == 'S':
        run_slot[0] = n; end = mp[0] + 32
        if SLOTS[n-1][0] == 'F': O.A("s_setprio 2"); o_read(8)
        while mp[0] < end: o_mfma(); o_after_mfma(end)
        assert cur[0] == n+1
    else:
        if SLOTS[n-1][0] != 'F': O.A("s_setprio 0")
        SWI = IL(args.swi)
        if n in SWI:
            o_flush(); q = SWI.index(n); per = -(-16 // len(SWI))
            assert all(SLOTS[m][0] == 'F' for m in range(n, NSL))
            O.A(f"s_cmp_eq_u32 s{sEX}, 0"); O.A(f"s_cbranch_scc1 L_sw{n}")
            for tp in range(q*per, min(16, (q+1)*per)):
                for r in range(4): O.A(f"v_permlane16_swap_b32 v{4*tp+r}, v{4*(tp+16)+r}")
            O.L.append(f"L_sw{n}:")
        if n+1 < NSL: o_bar(n+1)
        else:
            o_flush()
            O.A(f"s_cmp_eq_u32 s{sEX}, 0"); O.A("s_cbranch_scc1 L_oend")
            O.barrier('X7')
            O.A("s_setprio 3")
            for T in range(16): O.lg(f"ds_read_b128 a[{4*T}:{4*T+3}], v{vRX} offset:{16*T}", ('xf', T))
            for c in range(2):
                for T in range(16):
                    if c == 0 and T % 2 == 0: O.wait(ltag=('xf', T+1))
                    cc = "0" if T == 0 else f"a[{64+4*c}:{67+4*c}]"
                    O.A(f"v_mfma_f32_16x16x32_bf16 a[{64+4*c}:{67+4*c}], a[{4*T}:{4*T+3}], v[{4*(T+16*c)}:{4*(T+16*c)+3}], {cc}")
                    if c == 1 and T == 10: O.lg(f"ds_write_b128 v{vPX}, a[64:67] offset:{(PREG[7]-6)*UNIT}", ('pw',))
            O.A("s_nop 7")
            O.lg(f"ds_write_b128 v{vPX}, a[68:71] offset:{(PREG[7]-6)*UNIT + 1024}", ('pw',))
            O.barrier('none')
            O.L.append("L_oend:")
    if n in (1,2,3,4,5,7) or (n == 13 and args.few == 2): O.stamp(f"s{n}")
O.A("s_branch L_fin")

Y = Em(); Y.nost = bool(args.nys); Y.vmq = list(C.vmq); Y.names = list(C.names); A = Y.A
if args.xp:
    A("s_waitcnt lgkmcnt(0)"); emit_pf(Y, 0, args.xp, False, 166)
if SP:
    emit_spsetup(Y); A("s_waitcnt lgkmcnt(0)"); do_sp(Y, 's')
emit_xsetup(Y); emit_tx(Y, 0)
S0 = len(Y.L)
emit_tx(Y, 1)
assert XPAIR['S3'] == 0
if args.ys: A(f"s_mul_i32 s{sXR}, s{sSTRIP}, {XS}"); A(f"s_add_u32 s{sXR}, s{sXR}, {SPARE0}")
else: A(f"s_mov_b32 s{sXR}, s{sL1}")
A(f"v_bfe_u32 v11, v{vL}, 3, 2")
A(f"v_mad_u32_u24 v{vY}, v11, 12, v{vH}")
A(f"v_mul_u32_u24 v{vQm}, 14336, v{vY}")
A(f"v_add_u32 v{vQm}, v{vQm}, v{vQt}")
A(f"v_add_u32 v12, 1, v11"); A(f"v_lshrrev_b32 v12, 1, v12"); A(f"v_add_u32 v12, v12, v{vH}")
A(f"v_mul_u32_u24 v12, 14336, v12")
A(f"v_add_u32 v{vQt}, v{vQt}, v12")
A(f"s_lshl_b32 s{sTMP2}, s{sCOL}, 1")
A(f"v_lshl_add_u32 v{vOSZ}, v{vCol}, 2, s{sTMP2}")
A(f"v_mul_u32_u24 v{vSO}, {2*7168}, v{vG}")
A(f"v_add_u32 v{vSO}, v{vSO}, v{vOSZ}")
A(f"v_lshlrev_b32 v{vWrd}, 3, v{vCol}")
A(f"v_lshl_add_u32 v{vWrd}, v{vG}, 7, v{vWrd}")
A(f"v_add_u32 v{vWrd}, s{sXR}, v{vWrd}")
emit_consts(Y)
A(f"s_mov_b32 s{sHI}, 0xffff0000"); A(f"s_mov_b32 s{sP1}, 0"); A(f"s_mov_b32 s{sP1+1}, 0xffff0000")
A(f"v_lshlrev_b32 v12, 3, v{vG}"); A(f"s_mov_b32 s{sTMP}, 0x12180006"); A(f"v_lshrrev_b32 v{vSH1}, v12, s{sTMP}"); A(f"v_and_b32 v{vSH1}, 0xff, v{vSH1}")
A(f"v_sub_u32 v{vSH2}, 30, v{vSH1}")
emit_dy(Y)
A(f"v_and_b32 v12, 15, v{vL}")
A(f"v_mul_u32_u24 v{vR[0]}, {BLK}, v12")
A(f"v_lshl_add_u32 v{vR[0]}, v{vG}, 8, v{vR[0]}")
A(f"v_add_u32 v{vR[1]}, {2*PAIR}, v{vR[0]}")
A(f"s_lshl_b32 s{sTMP}, s{sSTRIP}, 12"); A(f"s_add_u32 s{sTMP}, s{sTMP}, {6*UNIT}")
A(f"v_lshl_add_u32 v{vP}, v{vL}, 4, s{sTMP}")
A(f"v_lshrrev_b32 v12, 2, v{vL}")
A(f"v_mul_u32_u24 v{vOUT}, 7168, v12")
A(f"v_and_b32 v12, 3, v{vL}")
A(f"v_lshl_add_u32 v{vOUT}, v12, 4, v{vOUT}")
A(f"v_add_u32 v{vOUT}, s{sTMP2}, v{vOUT}")
A(f"v_add_u32 v{vOUT2}, {16*7168}, v{vOUT}")
A(f"s_mov_b32 s{sO+2}, {OBYTES}"); A(f"s_mov_b32 s{sO+3}, 0x20000")
A(f"s_mul_i32 s{sOB}, s{sRB}, {16*7168}")
A(f"s_add_u32 s{sTO0+7}, s{sOB}, {224*7168}")
for tau in range(2, NT): emit_tx(Y, tau)
for tau in range(NT):
    emit_mod7(Y, sTO0+tau, tau)
    A(f"s_mul_i32 s{sTO0+tau}, s{sTO0+tau}, {32*7168}"); A(f"s_add_u32 s{sTO0+tau}, s{sTO0+tau}, s{sOB}")
code = Y.L[S0:]; del Y.L[S0:]
DY = Deq(Y)
yq = {}
for j in range(6): yq[j] = 32 + 2*j
for j in range(6, 12): yq[j] = 112 + 2*(j-6)
yq[12] = 124; yq[13] = 126
ysz = {0: (30, 31), 1: (110, 111), 2: (vS2, vZ2)}
def y_consts(g, c):
    rs, rz = ysz[g]; nd = [('S',g),('Z',g)]
    if c == 0:
        DY.vop(f"v_lshlrev_b32 v{vU[0]}, 16, v{rs}", nd); DY.vop(f"v_lshlrev_b32 v{vU[1]}, 16, v{rz}", nd)
    else:
        DY.vop(f"v_and_b32 v{vU[0]}, s{sHI}, v{rs}", nd); DY.vop(f"v_and_b32 v{vU[1]}, s{sHI}, v{rz}", nd)
    DY.consts(vU[0], vU[1], [])
for g in range(2):
    for c in range(2):
        y_consts(g, c)
        for j in range(6*g, 6*g+6): DY.dword(yq[j]+c, [('p', j)], 64*c + 5*j, 5)
for c in range(2):
    y_consts(2, c); nd = [('p',12),('p',13)]
    e0, e1 = yq[12]+c, yq[13]+c
    DY.vop(f"v_and_b32 v{vU[0]}, s{sM30}, v{e0}", nd); DY.vop(f"v_lshrrev_b32 v{vU[0]}, v{vSH1}, v{vU[0]}")
    DY.vop(f"v_lshl_or_b32 v{vU[0]}, v{e1}, v{vSH2}, v{vU[0]}", nd)
    DY.dword(vU[0], [], 64*c + 60, 4)
DY.vop("\n    ".join([f"s_mov_b64 exec, s[{sP1}:{sP1+1}]"] + [x for b in (60, 124) for x in (f"v_mov_b32 v{b+2}, v{b}", f"v_mov_b32 v{b+3}, v{b+1}", f"v_mov_b32 v{b}, 0", f"v_mov_b32 v{b+1}, 0")] + ["s_mov_b64 exec, -1", "s_nop 1"]))
rawregs = {('p', j): [yq[j], yq[j]+1] for j in range(14)}
for g in range(3): rawregs[('S',g)] = [ysz[g][0]]; rawregs[('Z',g)] = [ysz[g][1]]
for j in range(6, 12): rawregs[('p', j)] = [yq[j]+1]
DY.finalize(rawregs)
def y_sz(g):
    Y.A(f"s_mov_b32 s{sLS}, {(8+g if g < 2 else 16)*7168}"); vo = vSO if g < 2 else vOSZ
    Y.vm(f"buffer_load_dword v{ysz[g][0]}, v{vo}, s[{sS}:{sS+3}], s{sLS} offen", ('S',g))
    Y.vm(f"buffer_load_dword v{ysz[g][1]}, v{vo}, s[{sZ}:{sZ+3}], s{sLS} offen", ('Z',g))
    DY.issued.update([('S',g),('Z',g)])
def y_w(i): w_dma(Y, i, (48+2*i if i < 6 else 99)*14336)
def y_rd(j):
    i = j >> 1; Y.wait(vtag=('w', i))
    Y.lg(f"ds_read_b64 v[{yq[j]}:{yq[j]+1}], v{vWrd} offset:{i*1024 + (j&1)*512}", ('p', j)); DY.issued.add(('p', j))
YI = IL(args.yi); assert len(YI) == NY0-1
nvA = DY.n - sum(YI); assert nvA >= 0
X = lambda sl, j: (lambda: Y.x_full((sl, j)))
G = [[X(f"S{t}", j) for j in range(8)] for t in range(4)]
yW = [(lambda i=i: y_w(i)) for i in range(7)] + [(lambda g=g: y_sz(g)) for g in range(3)]
seq = []; ends = []
if args.ywp < 0: seq += yW; assert args.ypre >= 25
for t in range(4 if args.ys else 3):
    seq += G[t]; ends.append(len(seq))
    if t == args.ywp and not args.ys: seq += yW
pre_n = int(len(code)*args.ypre/100); Y.L.extend(code[:pre_n]); code = code[pre_n:]
if not SP: A("s_waitcnt lgkmcnt(0)")
if args.stamps: A(f"s_mov_b32 s{sST}, s98"); A(f"s_mov_b32 s{sST+1}, s100")
if args.pre == 2: Y.stamp("karg")
step = -(-len(code)//8); nb = 0
for i, f in enumerate(seq):
    f()
    if i < 8: Y.L.extend(code[i*step:(i+1)*step])
    if i == ends[0]-1: Y.stamp("issued")
    if args.pre == 2 and i in (1, 4): Y.stamp(f"d{i}")
    while nb < 2 and i+1 >= min(ends[nb] + args.ylead, len(seq)):
        if args.pre:
            Y.wait(vtag=('x', f"S{nb}", 7)); Y.stamp(f"pa{nb}")
        Y.barrier(f"S{nb}")
        if not args.pre: Y.stamp(f"a{nb}")
        if args.xp and nb == 0 and args.xp < NQ: emit_pf(Y, args.xp, NQ-args.xp, False, 166)
        do_sp(Y, f"a{nb}")
        nb += 1
def y_s3():
    for j in range(14): y_rd(j)
    Y.wait(lall=True)
    for f in G[3]:
        f()
        for _ in range(nvA//8): DY.emit()
    while DY.pos < nvA: DY.emit()
if args.ys:
    assert nvA == 0
    yW = [yW[i] for i in (0,7,1,2,3,8,4,5,6,9)]
    for f in yW[:args.ywb]: f()
    Y.stamp("preb1")
    Y.barrier(SLOTS[1])
    for f in yW[args.ywb:]: f()
    DY.rawq = deque([(max(0, min(DY.first[('p', j)] - 20, 100 + 6*j)), (lambda j=j: y_rd(j))) for j in range(14)])
else:
    if not args.s3: y_s3()
    Y.stamp("preb1")
    Y.barrier(SLOTS[1])
    if args.s3: y_s3()
for n in range(1, NY0):
    if args.xp and n == args.xp3: emit_pf(Y, 0, NQ, True, 166)
    do_sp(Y, str(n))
    mine = [it for it in DPLAN[n] if downer(n, it[1]) == 'Y']
    tgt = DY.pos + YI[n-1]
    for it in mine:
        for _ in range(args.yu if (n > 1 or not args.ys) else 0):
            if DY.pos < tgt: DY.emit()
        Y.x_full(it)
    while DY.pos < tgt: DY.emit()
    if args.pre != 2 or n in (1, 5): Y.stamp(f"i{n}")
    Y.barrier(SLOTS[n+1])
assert not DY.V
if SP: Y.A('s_waitcnt lgkmcnt(0)')
YF0 = len(Y.L)
RKA, RKB, RKC = IL(args.rka), IL(args.rkb), IL(args.rkc)
fsets = [(n, mt, hb) for n in range(NSL) if SLOTS[n][0] == 'F' for mt in range(2) for hb in range(2)] + [(NSL, 0, 0), (NSL, 0, 1)]
E = deque(); iss = {}; uid = [0]; acc_free = [0,1,2]; accof = {}; CI = []; fdone = set(); STQ = []; epn = [0]
def acc8(s): return 128 + 8*s
def e_add(kind, text, minpos=0, dep=None, done=None):
    uid[0] += 1; E.append((kind, text, uid[0], minpos, dep, done)); return uid[0]
def e_min(e):
    m = e[3]
    for d in (e[4] or []): m = max(m, iss[d] + 3)
    return m
def emit_st(): Y.vm(STQ.pop(0)[1], ('st',))
def emit_e():
    e = E.popleft(); m = e_min(e)
    if e[0] == 'q': STQ.append(e[1]); return
    if e[0] == 'chk':
        if any(p == e[1] for p, _ in STQ):
            while any(p == e[1] for p, _ in STQ): emit_st()
            Y.A("s_nop 0")
        return
    if len(Y.L) < m: Y.A(f"s_nop {m - len(Y.L) - 1}")
    Y.A(e[1]); iss[e[2]] = len(Y.L)-1
    if e[5]: e[5]()
STM = args.stmod.replace('+',' ')
def push_ep(slot, tau, mt, pos):
    a = acc8(slot); P = 152 + 4*(epn[0] % 3); epn[0] += 1; T0, T1 = 164, 165
    e_add('chk', P)
    cv = {}
    t0 = e_add('v', f"v_cvt_pk_bf16_f32 v{T0}, v{a}, v{a+4}", pos+9); t1 = e_add('v', f"v_cvt_pk_bf16_f32 v{T1}, v{a+1}, v{a+5}")
    for r in (2, 3, 0, 1): cv[r] = e_add('v', f"v_cvt_pk_bf16_f32 v{P+r}, v{a+r}, v{a+4+r}", done=(lambda: acc_free.append(slot)) if r == 1 else None)
    d = lambda dst, src, op, m: f"v_mov_b32_dpp v{dst}, v{src} {op} row_mask:0xf bank_mask:{m}"
    a0 = e_add('v', d(P+0, P+2, 'row_ror:8', '0xc'), dep=[cv[2], cv[0]])
    a1 = e_add('v', d(P+1, P+3, 'row_ror:8', '0xc'), dep=[cv[3], cv[1]])
    a2 = e_add('v', d(P+2, T0, 'row_ror:8', '0x3'), dep=[t0])
    a3 = e_add('v', d(P+3, T1, 'row_ror:8', '0x3'), dep=[t1])
    u0 = e_add('v', f"v_mov_b32 v{T0}, v{P+0}"); u1 = e_add('v', f"v_mov_b32 v{T1}, v{P+2}")
    e_add('v', d(P+0, P+1, 'row_shr:4', '0xa'), dep=[a1, a0])
    e_add('v', d(P+2, P+3, 'row_shr:4', '0xa'), dep=[a3, a2])
    e_add('v', d(P+1, T0, 'row_shl:4', '0x5'), dep=[u0])
    e_add('v', d(P+3, T1, 'row_shl:4', '0x5'), dep=[u1])
    e_add('q', (P, f"buffer_store_dwordx4 v[{P}:{P+3}], v{vOUT if mt == 0 else vOUT2}, s[{sO}:{sO+3}], s{sTO0+tau} offen {STM}"))
def yfrag(si, tp): return 32*(si % 2) + 4*tp
def y_read(si, tp):
    n, mt, hb = fsets[si]; p = XPAIR[SLX[n]]; f = yfrag(si, tp); fdone.add((si, tp))
    Y.lg(f"ds_read_b128 a[{f}:{f+3}], v{vR[p >> 1]} offset:{(p & 1)*PAIR + (1 if n == NSL else mt)*UNIT + 16*(8*hb+tp)}", ('g', si, tp))
def y_ci(n, mt):
    while not acc_free: emit_e()
    s = acc_free.pop(0); accof[(n, mt)] = s; tau = int(SLX[n][1])
    for c in range(2): CI.append((f"ds_read_b128 v[{acc8(s)+4*c}:{acc8(s)+4*c+3}], v{vP} offset:{(PREG[tau]-6)*UNIT + mt*2048 + c*1024}", ('ci', n, mt, c)))
def nbytes(line):
    t = line.strip()
    return 4 if (t.startswith('s_') or t.startswith('v_mov_b32 v')) else 8
for si, (n, mt, hb) in enumerate(fsets):
    tau = int(SLX[n][1]); sidx = 2*mt + hb; lastset = sidx == 3 or si == len(fsets)-1
    cont = n+1 <= NSL and SLX[n+1][0] != 'S'
    fresh = sidx == 0 and SLOTS[n-1][0] != 'F'
    if n == NSL and sidx == 0:
        Y.A(f"s_cmp_eq_u32 s{sEX}, 0"); Y.A("s_cbranch_scc1 L_ytail")
        snap = (len(Y.L), list(Y.vmq), list(Y.lgq), deque(E), list(STQ), dict(iss), list(acc_free))
        while E: emit_e()
        while STQ: emit_st()
        YTAIL = Y.L[snap[0]:]; del Y.L[snap[0]:]
        Y.vmq[:] = snap[1]; Y.lgq[:] = snap[2]; E.extend(snap[3]); STQ[:] = snap[4]; iss.clear(); iss.update(snap[5]); acc_free[:] = snap[6]
    if fresh:
        Y.A("s_setprio 2"); y_ci(n, 0)
        Y.lg(*CI.pop(0))
        for tp in range(8): y_read(si, tp)
        Y.lg(*CI.pop(0))
    if sidx == 1 and n < NSL: y_ci(n, 1)
    wg = 2 if sidx == 0 else args.wg
    for c in range(2):
        for tp in range(8):
            T = 8*hb + tp; k = 8*c + tp
            if c == 0 and tp % wg == 0: Y.wait(ltag=('g', si, tp+wg-1))
            a = acc8(accof[(n, mt)]) + 4*c; f = yfrag(si, tp); assert (si, tp) in fdone
            if T == 0: assert not any(x[1][1:3] == (n, mt) for x in CI); Y.wait(ltag=('ci', n, mt, c))
            Y.A(f"v_mfma_f32_16x16x32_bf16 v[{a}:{a+3}], a[{f}:{f+3}], v[{64*c+4*T}:{64*c+4*T+3}], v[{a}:{a+3}]")
            mpos = len(Y.L); full = False
            if hb == 1 and k == 15: push_ep(accof[(n, mt)], tau, mt, len(Y.L)-1)
            if sidx == (args.bs if n+1 < NSL else 3) and k == (args.bk if n+1 < NSL else args.xbk) and n+1 <= NSL:
                assert sidx == 3 or all((si+1, j) in fdone for j in range(8))
                Y.barrier(SLX[n+1]); full = True
                if not cont: Y.A("s_setprio 3")
            if n == NSL-1 and 16*sidx + k == args.xb0: Y.A("s_barrier"); Y.nbar += 1; full = True
            if lastset and cont and k == max(RKB[0]-2, args.bk if args.bs == 3 else 0): y_ci(n+1, 0)
            RK = RKB if lastset else (RKC if sidx == 2 else RKA)
            if not lastset or cont:
                for j in range(8):
                    if RK[j] == k: y_read(si+1, j)
            used = lambda: sum(nbytes(x) for x in Y.L[mpos:])
            if CI and not full and used() < 8: Y.lg(*CI.pop(0))
            quiet = args.sz0 <= 16*sidx + k <= args.sz1 or n >= NSL-1
            if STQ and quiet and not full and len(Y.L) == mpos: emit_st(); full = True
            while E and E[0][0] in ('q', 'chk'): emit_e()
            while not full and E and E[0][0] == 'v' and len(Y.L) >= e_min(E[0]) and used() + nbytes(E[0][1]) <= args.capb: emit_e()
            while E and E[0][0] == 'q': emit_e()
    if lastset and n in (9, 11): Y.stamp(f"s{n}")
    if sidx == 3 and n+1 < NSL and not cont:
        m = n+1
        while SLOTS[m][0] != 'F':
            Y.A("s_setprio 0")
            for it in DPLAN.get(m, []):
                if downer(m, it[1]) == 'Y':
                    Y.x_full(it)
                    for _ in range(3):
                        if E: emit_e()
            while E: emit_e()
            while STQ: emit_st()
            Y.barrier(SLOTS[m+1]); m += 1
while E: emit_e()
while STQ: emit_st()
Y.A("s_branch L_yend"); Y.L.append("L_ytail:"); Y.L.extend(YTAIL); Y.L.append("L_yend:")
assert O.nbar == Y.nbar, (O.nbar, Y.nbar)

dbg = args.dbg.split(',')
def drop(E_, pred, start=0): E_.L[:] = [x for i, x in enumerate(E_.L) if not (i >= start and pred(x))]
if 'nopw' in dbg: drop(O, lambda x: 'ds_write' in x)
if 'nost' in dbg: drop(Y, lambda x: 'buffer_store' in x)
if 'noep' in dbg: drop(Y, lambda x: x.strip().startswith('v_') and 'mfma' not in x, YF0)
F = Em(); A = F.A
if args.stamps:
    nn = max(len(O.names), len(Y.names))
    O.L.pop()
    for Em_ in (O, Y):
        while len(Em_.names) < nn: Em_.names.append("pad")
        Em_.stamp("end")
    O.A("s_branch L_fin" if not args.noo else "s_endpgm")
    A("s_waitcnt vmcnt(0)")
    A("s_memrealtime s[6:7]"); A("s_waitcnt lgkmcnt(0)"); A(f"s_mov_b32 s{sST+nn+1}, s6")
    A(f"s_lshl_b32 s{sTMP}, s2, 3"); A(f"s_add_u32 s{sTMP}, s{sTMP}, s{sW8}"); A(f"s_mul_i32 s{sTMP}, s{sTMP}, {16*8}")
    A("v_mov_b32 v2, 0"); A("v_mov_b32 v1, 0")
    for i in range(nn+2):
        A(f"v_mov_b32 v0, s{sST+i}")
        A(f"buffer_store_dwordx2 v[0:1], v2, s[{sWS}:{sWS+3}], s{sTMP} offen offset:{8*i}")
        A("s_waitcnt vmcnt(0)")
    open(args.o[:-2] + ".names", "w").write(" ".join(O.names + ["rt1"]) + "\n" + " ".join(Y.names + ["rt1"]))
PF = Em(); A = PF.A
if args.pw8:
    XR = args.xr; NRW = XR
    A(f"s_load_dwordx2 s[{sX}:{sX+1}], s[0:1], 0")
    A("v_and_b32 v1, 63, v0"); A("v_lshrrev_b32 v2, 6, v0")
    A("v_mul_u32_u24 v3, 26, v1"); A("v_lshrrev_b32 v3, 8, v3")
    A("v_mul_u32_u24 v4, 10, v3"); A("v_sub_u32 v4, v1, v4")
    A("v_lshlrev_b32 v4, 7, v4"); A("v_min_u32 v4, 1076, v4")
    A(f"v_mul_u32_u24 v3, {256*2040}, v3"); A("v_add_u32 v4, v4, v3")
    A("v_mul_u32_u24 v2, 2040, v2"); A("v_add_u32 v4, v4, v2")
    A("s_lshr_b32 s4, s2, 3"); A(f"s_mul_i32 s4, s4, {8*2040}")
    A(f"s_and_b32 s5, s2, {7 & ~(XR-1)}"); A(f"s_mul_i32 s5, s5, {256*2040}"); A("s_add_u32 s4, s4, s5")
    A("v_add_u32 v4, s4, v4")
    A("v_add_u32 v5, -120, v4"); A("v_max_i32 v5, 0, v5")
    A(f"s_mov_b32 s{sX+2}, {XBYTES}"); A(f"s_mov_b32 s{sX+3}, 0x20000")
    m = (1 << (10*NRW)) - 1
    A(f"s_mov_b32 exec_lo, {hex(m & 0xffffffff)}"); A(f"s_mov_b32 exec_hi, {hex(m >> 32)}")
    A("s_waitcnt lgkmcnt(0)")
    for i, sl in enumerate((['S0', 'S1'] + SLOTS[1:])[:args.pfn]):
        tau = int(sl[1])
        A(f"s_mov_b32 s6, {tau*32*2040 + (960 if sl[0] == 'F' else 0)}")
        A(f"buffer_load_dword v{8+i}, v{5 if sl[0] == 'S' else 4}, s[{sX}:{sX+3}], s6 offen")
        A("s_barrier")
    A("s_waitcnt vmcnt(0)")
    A("s_endpgm")
hdr = open('standalone__weight_only_int_gptq__prompt.s.ref').read().split('\n')
H = [l for l in hdr if l.startswith(';') and '@launch' not in l and not l.startswith('; Override') and not l.startswith('; grid=')]
out = H + [f"; @launch grid=({GRID},1,1) block=(512,1,1) lds={LDS_BYTES}",
  '.amdgcn_target "amdgcn-amd-amdhsa--gfx950"', ".text", f".globl {NAME}", ".p2align 8", f".type {NAME},@function", f"{NAME}:"]
out += C.L + O.L + [".p2align 6", "L_Y:"] + Y.L + ["L_fin:"] + F.L
out += ["L_end:", "    s_endpgm", f".set CODE_BYTES, L_end - {NAME} - 128", '.section .rodata,"a"', ".p2align 6", f".amdhsa_kernel {NAME}",
  "  .amdhsa_next_free_vgpr 256", "  .amdhsa_next_free_sgpr 102", f"  .amdhsa_accum_offset {ACC_OFF}",
  "  .amdhsa_group_segment_fixed_size 0", "  .amdhsa_kernarg_size 64", "  .amdhsa_user_sgpr_count 2",
  "  .amdhsa_user_sgpr_kernarg_segment_ptr 1", "  .amdhsa_system_sgpr_workgroup_id_x 1", ".end_amdhsa_kernel"]
open(args.o, "w").write("\n".join(out) + "\n")
print(f"wrote {args.o}: C {len(C.L)} O {len(O.L)} Y {len(Y.L)} NVO={D.n} NVY={DY.n} nvA={nvA} bars={O.nbar}")
```

```python
import sys,re
src=open(sys.argv[1]).read(); mode=sys.argv[2]; M=int(sys.argv[3]); out=sys.argv[4]
names=open(sys.argv[1][:-2]+".names").read().split("\n"); no=names[1].split(); n=len(no)
N="standalone__weight_only_int_gptq__prompt_kernel"
m=re.search(r"; @launch grid=\((\d+),1,1\) block=\((\d+),1,1\) lds=(\d+)\n",src)
main=f"; @launch kernel={N} grid=({m.group(1)},1,1) block=({m.group(2)},1,1) lds={m.group(3)}\n"
pre = "; @launch kernel=pre_kernel grid=(1,1,1) block=(64,1,1) lds=0\n" if mode == 'pregap' else ""
src=src.replace(m.group(0),pre+main+"; @launch kernel=dec_kernel grid=(1,1,1) block=(64,1,1) lds=0\n")
L=[]; A=L.append
A(".text\n.globl dec_kernel\n.p2align 8\n.type dec_kernel,@function\ndec_kernel:")
A("s_memrealtime s[22:23]")
A("s_cmp_ge_u32 s2, 1\ns_cbranch_scc1 Ldend")
A("s_load_dwordx2 s[8:9], s[0:1], 56\ns_mov_b32 s10, 229376\ns_mov_b32 s11, 0x20000")
A("v_lshlrev_b32 v1, 10, v0\ns_waitcnt lgkmcnt(0)")
if mode in ('span','post','pregap'):
    lo_off, hi_off = 4*128, 4*128 + 8*(n-1)
elif mode == 'spread':
    lo_off, hi_off = 4*128, 4*128
else:
    i = no.index(mode); lo_off, hi_off = 4*128+8, 4*128+8*i
for k in range(3):
    A(f"s_mov_b32 s3, {k*65536}")
    A(f"buffer_load_dword v{2+k}, v1, s[8:11], s3 offen offset:{lo_off} sc0 sc1")
    A(f"buffer_load_dword v{6+k}, v1, s[8:11], s3 offen offset:{hi_off} sc0 sc1")
A("s_waitcnt vmcnt(0)")
if mode in ('span','spread','post','pregap'):
    A("v_min3_u32 v2, v2, v3, v4\nv_max3_u32 v6, v6, v7, v8\ns_mov_b32 s12, -1\ns_mov_b32 s13, 0\ns_nop 1")
    for l in range(64):
        A(f"v_readlane_b32 s14, v2, {l}\nv_readlane_b32 s15, v6, {l}\ns_nop 0\ns_min_u32 s12, s12, s14\ns_max_u32 s13, s13, s15")
    if mode == 'post': A("s_sub_u32 s12, s22, s13")
    elif mode == 'pregap':
        A("s_mov_b32 s10, 0x10000000\ns_mov_b32 s3, 0x100000\nv_mov_b32 v9, 0\nbuffer_load_dword v10, v9, s[8:11], s3 offen sc0 sc1\ns_waitcnt vmcnt(0)\nv_readfirstlane_b32 s14, v10\ns_nop 1\ns_sub_u32 s12, s12, s14")
    else: A("s_sub_u32 s12, s13, s12")
else:
    A("v_sub_u32 v2, v6, v2\nv_sub_u32 v3, v7, v3\nv_sub_u32 v4, v8, v4\nv_add3_u32 v2, v2, v3, v4\ns_mov_b32 s12, 0\ns_nop 1")
    for l in range(64):
        A(f"v_readlane_b32 s14, v2, {l}\ns_nop 1\ns_add_u32 s12, s12, s14")
    A("s_mul_hi_u32 s12, s12, 2236962")
A(f"s_mul_i32 s12, s12, {M}\ns_min_u32 s12, s12, 50000")
A("s_memrealtime s[16:17]\ns_waitcnt lgkmcnt(0)\nLsp:\ns_memrealtime s[18:19]\ns_waitcnt lgkmcnt(0)\ns_sub_u32 s20, s18, s16\ns_cmp_lt_u32 s20, s12\ns_cbranch_scc1 Lsp")
A("Ldend:\ns_endpgm")
A(""".globl pre_kernel
.p2align 8
.type pre_kernel,@function
pre_kernel:
s_cmp_ge_u32 s2, 1
s_cbranch_scc1 Lpend
s_load_dwordx2 s[8:9], s[0:1], 56
s_mov_b32 s10, 0x10000000
s_mov_b32 s11, 0x20000
s_waitcnt lgkmcnt(0)
s_memrealtime s[4:5]
s_mov_b32 s3, 0x100000
v_mov_b32 v1, 0
s_waitcnt lgkmcnt(0)
v_mov_b32 v2, s4
buffer_store_dword v2, v1, s[8:11], s3 offen
Lpend:
s_endpgm
.section .rodata,"a"
.p2align 6
.amdhsa_kernel pre_kernel
  .amdhsa_next_free_vgpr 16
  .amdhsa_next_free_sgpr 32
  .amdhsa_accum_offset 16
  .amdhsa_group_segment_fixed_size 0
  .amdhsa_kernarg_size 64
  .amdhsa_user_sgpr_count 2
  .amdhsa_user_sgpr_kernarg_segment_ptr 1
  .amdhsa_system_sgpr_workgroup_id_x 1
.end_amdhsa_kernel""")
A('''.section .rodata,"a"
.p2align 6
.amdhsa_kernel dec_kernel
  .amdhsa_next_free_vgpr 16
  .amdhsa_next_free_sgpr 32
  .amdhsa_accum_offset 16
  .amdhsa_group_segment_fixed_size 0
  .amdhsa_kernarg_size 64
  .amdhsa_user_sgpr_count 2
  .amdhsa_user_sgpr_kernarg_segment_ptr 1
  .amdhsa_system_sgpr_workgroup_id_x 1
.end_amdhsa_kernel''')
open(out,'w').write(src+"\n".join(L)+"\n")
```

```python
import sys,re
src=open(sys.argv[1]).read(); mode=sys.argv[2]; M=int(sys.argv[3]); out=sys.argv[4]
names=open(sys.argv[1][:-2]+".names").read().split("\n"); no=names[1].split(); n=len(no)
N="standalone__weight_only_int_gptq__prompt_kernel"
m=re.search(r"; @launch grid=\((\d+),1,1\) block=\((\d+),1,1\) lds=(\d+)\n",src)
main=f"; @launch kernel={N} grid=({m.group(1)},1,1) block=({m.group(2)},1,1) lds={m.group(3)}\n"
pre = "; @launch kernel=pre_kernel grid=(1,1,1) block=(64,1,1) lds=0\n" if mode == 'pregap' else ""
src=src.replace(m.group(0),pre+main+"; @launch kernel=dec_kernel grid=(1,1,1) block=(64,1,1) lds=0\n")
L=[]; A=L.append
A(".text\n.globl dec_kernel\n.p2align 8\n.type dec_kernel,@function\ndec_kernel:")
A("s_memrealtime s[22:23]")
A("s_cmp_ge_u32 s2, 1\ns_cbranch_scc1 Ldend")
A("s_load_dwordx2 s[8:9], s[0:1], 56\ns_mov_b32 s10, 262144\ns_mov_b32 s11, 0x20000")
A("v_lshlrev_b32 v1, 10, v0\ns_waitcnt lgkmcnt(0)")
if mode in ('span','post','pregap'):
    lo_off, hi_off = 4*128, 4*128 + 8*(n-1)
elif mode == 'spread':
    lo_off, hi_off = 4*128, 4*128
else:
    i = no.index(mode); lo_off, hi_off = 4*128+8, 4*128+8*i
for k in range(3):
    A(f"s_mov_b32 s3, {[0, 65536*3//2 - 8192, 65536*3 - 16384][k] if mode in ('span','post','pregap') else k*65536}")
    A(f"buffer_load_dword v{2+k}, v1, s[8:11], s3 offen offset:{lo_off} sc0 sc1")
    A(f"buffer_load_dword v{6+k}, v1, s[8:11], s3 offen offset:{hi_off} sc0 sc1")
A("s_waitcnt vmcnt(0)")
if mode in ('span','spread','post','pregap'):
    A("v_min3_u32 v2, v2, v3, v4\nv_max3_u32 v6, v6, v7, v8\ns_mov_b32 s12, -1\ns_mov_b32 s13, 0\ns_nop 1")
    for l in range(64):
        A(f"v_readlane_b32 s14, v2, {l}\nv_readlane_b32 s15, v6, {l}\ns_nop 0\ns_min_u32 s12, s12, s14\ns_max_u32 s13, s13, s15")
    if mode == 'post': A("s_sub_u32 s12, s22, s13")
    elif mode == 'pregap':
        A("s_mov_b32 s10, 0x10000000\ns_mov_b32 s3, 0x100000\nv_mov_b32 v9, 0\nbuffer_load_dword v10, v9, s[8:11], s3 offen sc0 sc1\ns_waitcnt vmcnt(0)\nv_readfirstlane_b32 s14, v10\ns_nop 1\ns_sub_u32 s12, s12, s14")
    else: A("s_sub_u32 s12, s13, s12")
else:
    A("v_sub_u32 v2, v6, v2\nv_sub_u32 v3, v7, v3\nv_sub_u32 v4, v8, v4\nv_add3_u32 v2, v2, v3, v4\ns_mov_b32 s12, 0\ns_nop 1")
    for l in range(64):
        A(f"v_readlane_b32 s14, v2, {l}\ns_nop 1\ns_add_u32 s12, s12, s14")
    A("s_mul_hi_u32 s12, s12, 2236962")
A(f"s_mul_i32 s12, s12, {M}\ns_min_u32 s12, s12, 50000")
A("s_memrealtime s[16:17]\ns_waitcnt lgkmcnt(0)\nLsp:\ns_memrealtime s[18:19]\ns_waitcnt lgkmcnt(0)\ns_sub_u32 s20, s18, s16\ns_cmp_lt_u32 s20, s12\ns_cbranch_scc1 Lsp")
A("Ldend:\ns_endpgm")
A(""".globl pre_kernel
.p2align 8
.type pre_kernel,@function
pre_kernel:
s_cmp_ge_u32 s2, 1
s_cbranch_scc1 Lpend
s_load_dwordx2 s[8:9], s[0:1], 56
s_mov_b32 s10, 0x10000000
s_mov_b32 s11, 0x20000
s_waitcnt lgkmcnt(0)
s_memrealtime s[4:5]
s_mov_b32 s3, 0x100000
v_mov_b32 v1, 0
s_waitcnt lgkmcnt(0)
v_mov_b32 v2, s4
buffer_store_dword v2, v1, s[8:11], s3 offen
Lpend:
s_endpgm
.section .rodata,"a"
.p2align 6
.amdhsa_kernel pre_kernel
  .amdhsa_next_free_vgpr 16
  .amdhsa_next_free_sgpr 32
  .amdhsa_accum_offset 16
  .amdhsa_group_segment_fixed_size 0
  .amdhsa_kernarg_size 64
  .amdhsa_user_sgpr_count 2
  .amdhsa_user_sgpr_kernarg_segment_ptr 1
  .amdhsa_system_sgpr_workgroup_id_x 1
.end_amdhsa_kernel""")
A('''.section .rodata,"a"
.p2align 6
.amdhsa_kernel dec_kernel
  .amdhsa_next_free_vgpr 16
  .amdhsa_next_free_sgpr 32
  .amdhsa_accum_offset 16
  .amdhsa_group_segment_fixed_size 0
  .amdhsa_kernarg_size 64
  .amdhsa_user_sgpr_count 2
  .amdhsa_user_sgpr_kernarg_segment_ptr 1
  .amdhsa_system_sgpr_workgroup_id_x 1
.end_amdhsa_kernel''')
txt = src+"\n".join(L)+"\n"
if len(sys.argv) > 5:
    txt = txt.replace(N, "diag_kernel")
    txt = re.sub(r"\bL_(\w+)", r"D_\1", txt).replace("CODE_BYTES", "DCODE_BYTES")
    mm = open(sys.argv[5]).read()
    body = mm[mm.index(".text\n"):]
    txt = txt.replace("lds=0\n.amdgcn_target", "lds=0\n" + main + ".amdgcn_target", 1) + body
open(out,'w').write(txt)
```
